```python
import torch

def _softmax(x, axis=-1):
    return torch.softmax(x, dim=axis)
def _gelu(x):
    return torch.nn.functional.gelu(x, approximate="tanh")
def _silu(x):
    return torch.nn.functional.silu(x)
def _sigmoid(x):
    return torch.sigmoid(x)
def _layernorm(x, axis=-1, eps=1e-5):
    m = x.mean(dim=axis, keepdim=True)
    v = x.var(dim=axis, keepdim=True, unbiased=False)
    return (x - m) / torch.sqrt(v + eps)
def _scatter_add(tgt, idx, src, axis=0):
    return tgt.clone().index_add_(axis, idx, src)
def _segment_sum(src, seg, n):
    out = torch.zeros((n,) + src.shape[1:], dtype=src.dtype)
    return out.index_add_(0, seg, src)
def _pad(x, pw):
    flat = tuple(v for pair in reversed(pw) for v in pair)
    return torch.nn.functional.pad(x, flat)

kernel_name = 'gather_scatter__cheap_equivariant_egnn__graph'

def setup_inputs():

    _w = (lambda a: (lambda t: t.to(torch.bfloat16) if t.is_floating_point() else t)(torch.as_tensor(a)))
    N, deg, D, De = 10000, 64, 64, max(16, 1)
    E = N * deg
    return {
        "h": _w((lambda *s: torch.randn(*s, dtype=torch.bfloat16) * 0.1)(N, D)),
        "pos": _w((lambda *s: torch.randn(*s, dtype=torch.bfloat16) * 0.8)(N, 3)),
        "e_attr": _w((lambda *s: torch.randn(*s, dtype=torch.bfloat16) * 0.8)(E, De)),
        "src": _w((lambda lo, hi, *s: torch.randint(lo, hi, s))(0, N, E).to(torch.int64)),
        "dst": _w((lambda lo, hi, *s: torch.randint(lo, hi, s))(0, N, E).to(torch.int64)),
        "w_e": _w(0.1 * (lambda *s: torch.randn(*s, dtype=torch.bfloat16) * 0.8)(2 * D + 1 + De, D)),
        "w_x": _w(0.1 * (lambda *s: torch.randn(*s, dtype=torch.bfloat16) * 0.1)(D, 1)),
        "w_h": _w(0.1 * (lambda *s: torch.randn(*s, dtype=torch.bfloat16) * 0.1)(2 * D, D)),
    }

def reference(h, pos, e_attr, src, dst, w_e, w_x, w_h):
    N, D = h.shape[0], h.shape[1]
    diff = pos[dst] - pos[src]
    dist2 = torch.sum(diff * diff, axis=-1, keepdims=True)
    e_in = torch.concatenate([h[dst], h[src], dist2, e_attr], axis=-1)
    m_ij = _silu(e_in @ w_e)
    coord_scale = m_ij @ w_x
    pos_new = pos + _segment_sum(diff * coord_scale, dst, N)
    m_i = _segment_sum(m_ij, dst, N)
    h_new = h + _silu(torch.concatenate([h, m_i], axis=-1) @ w_h)
    return h_new, pos_new
```

```python
import sys

N = 10000
E = 640000
WS_CNT  = 0
WS_RANK = 0x10000
WS_OFF  = 0x290000
WS_SORT = 0x2A0000
WS_POS4 = 0x790000
WS_MI   = 0x7C0000
WS_P1   = 0xA40000
WS_WTE  = 0xCC0000
WS_WTH  = 0xCC4000

out = []
def A(s=""):
    out.append(s)

def srd(dst, ptr, off, size):
    if off:
        A(f"    s_add_u32 s{dst}, s{ptr}, {off:#x}")
        A(f"    s_addc_u32 s{dst+1}, s{ptr+1}, 0")
    else:
        A(f"    s_mov_b32 s{dst}, s{ptr}")
        A(f"    s_mov_b32 s{dst+1}, s{ptr+1}")
    A(f"    s_mov_b32 s{dst+2}, {size}")
    A(f"    s_mov_b32 s{dst+3}, 0x00020000")

def kernel_begin(name):
    A(f".globl {name}")
    A(".p2align 8")
    A(f".type {name},@function")
    A(f"{name}:")

descs = []
def kernel_desc(name, vgpr, sgpr=96):
    acc = (vgpr + 3) // 4 * 4
    descs.append(f""".p2align 6
.amdhsa_kernel {name}
  .amdhsa_next_free_vgpr {vgpr}
  .amdhsa_next_free_sgpr {sgpr}
  .amdhsa_accum_offset {acc}
  .amdhsa_group_segment_fixed_size 0
  .amdhsa_kernarg_size 88
  .amdhsa_user_sgpr_count 2
  .amdhsa_user_sgpr_kernarg_segment_ptr 1
  .amdhsa_system_sgpr_workgroup_id_x 1
.end_amdhsa_kernel""")

def load_args():
    A("    s_load_dwordx16 s[4:19], s[0:1], 0")
    A("    s_load_dwordx2 s[20:21], s[0:1], 64")
    A("    s_load_dwordx2 s[22:23], s[0:1], 80")
    A("    s_waitcnt lgkmcnt(0)")

LOG2E_NEG = "0xbfb8aa3b"

def silu(x, t):
    A(f"    v_mul_f32 v{t}, {LOG2E_NEG}, v{x}")
    A(f"    v_exp_f32 v{t}, v{t}")
    A(f"    s_nop 0")
    A(f"    v_add_f32 v{t}, 1.0, v{t}")
    A(f"    v_rcp_f32 v{t}, v{t}")
    A(f"    s_nop 0")
    A(f"    v_mul_f32 v{x}, v{x}, v{t}")

def k0():
    name = "egnn_k0_kernel"
    kernel_begin(name)
    load_args()
    A("    s_cmp_ge_u32 s2, 157")
    A("    s_cbranch_scc1 K0_END")
    srd(24, 6, 0, N*6)
    srd(28, 22, WS_CNT, N*4)
    srd(32, 22, WS_POS4, N*16)
    srd(36, 4, 0, N*128)
    srd(40, 14, 0, 145*128)
    srd(44, 22, WS_P1, N*256)
    srd(48, 18, 0, 128*128)
    srd(52, 22, WS_WTE, 12*1024)
    srd(56, 22, WS_WTH, 16*1024)
    A("    v_lshlrev_b32 v1, 6, s2")
    A("    v_add_u32 v1, v1, v0")
    A("    v_cmp_gt_u32 vcc, 64, v0")
    A("    s_and_saveexec_b64 s[60:61], vcc")
    A("    s_cbranch_execz K0_A_DONE")
    A("    v_mul_u32_u24 v2, 6, v1")
    A("    buffer_load_ushort v4, v2, s[24:27], 0 offen")
    A("    buffer_load_ushort v5, v2, s[24:27], 0 offen offset:2")
    A("    buffer_load_ushort v6, v2, s[24:27], 0 offen offset:4")
    A("    v_mov_b32 v7, 0")
    A("    v_lshlrev_b32 v3, 2, v1")
    A("    buffer_store_dword v7, v3, s[28:31], 0 offen")
    A("    v_lshlrev_b32 v3, 4, v1")
    A("    s_waitcnt vmcnt(1)")
    A("    v_lshlrev_b32 v4, 16, v4")
    A("    v_lshlrev_b32 v5, 16, v5")
    A("    v_lshlrev_b32 v6, 16, v6")
    A("    buffer_store_dwordx4 v[4:7], v3, s[32:35], 0 offen")
    A("K0_A_DONE:")
    A("    s_mov_b64 exec, -1")
    A("    v_and_b32 v1, 63, v0")
    A("    v_lshrrev_b32 v2, 6, v0")
    A("    v_and_b32 v3, 15, v1")
    A("    v_lshrrev_b32 v4, 4, v1")
    A("    v_lshlrev_b32 v5, 10, v4")
    A("    v_lshl_add_u32 v5, v3, 1, v5")
    A("    v_add_u32 v72, 4096, v5")
    for s in range(2):
        for j in range(4):
            for q in range(8):
                off = q*128 + j*32
                A(f"    buffer_load_ushort v{48+q}, v5, s[40:43], {4096*s} offen offset:{off}" if s == 0 else f"    buffer_load_ushort v{48+q}, v72, s[40:43], 0 offen offset:{off}")
            A("    s_waitcnt vmcnt(0)")
            b = 16 + (s*4+j)*4
            for r in range(4):
                A(f"    v_lshl_or_b32 v{b+r}, v{48+2*r+1}, 16, v{48+2*r}")
    A("    v_lshlrev_b32 v6, 6, s2")
    A("    v_lshl_add_u32 v6, v2, 4, v6")
    A("    v_add_u32 v6, v6, v3")
    A("    v_lshlrev_b32 v7, 7, v6")
    A("    v_lshl_add_u32 v7, v4, 4, v7")
    A("    buffer_load_dwordx4 v[8:11], v7, s[36:39], 0 offen")
    A("    buffer_load_dwordx4 v[12:15], v7, s[36:39], 0 offen offset:64")
    A("    s_waitcnt vmcnt(0)")
    for j in range(4):
        d = 56 + 4*j
        A(f"    v_mfma_f32_16x16x32_bf16 v[{d}:{d+3}], v[{16+j*4}:{16+j*4+3}], v[8:11], 0")
        A(f"    v_mfma_f32_16x16x32_bf16 v[{d}:{d+3}], v[{32+j*4}:{32+j*4+3}], v[12:15], v[{d}:{d+3}]")
    A("    s_nop 15")
    A("    v_lshlrev_b32 v7, 8, v6")
    A("    v_lshl_add_u32 v7, v4, 4, v7")
    for j in range(4):
        d = 56 + 4*j
        A(f"    buffer_store_dwordx4 v[{d}:{d+3}], v7, s[44:47], 0 offen offset:{j*64}")
    A("    s_cmp_ge_u32 s2, 7")
    A("    s_cbranch_scc1 K0_END")
    A("    v_lshlrev_b32 v1, 8, s2")
    A("    v_add_u32 v1, v1, v0")
    A("    v_and_b32 v2, 63, v1")
    A("    v_lshrrev_b32 v3, 6, v1")
    A("    v_and_b32 v4, 15, v2")
    A("    v_lshrrev_b32 v5, 4, v2")
    A("    v_and_b32 v6, 3, v3")
    A("    v_lshrrev_b32 v7, 2, v3")
    A("    v_lshl_add_u32 v8, v6, 4, v4")
    A("    v_lshlrev_b32 v8, 1, v8")
    A("    v_lshlrev_b32 v9, 5, v7")
    A("    v_lshl_add_u32 v9, v5, 3, v9")
    A("    v_add_u32 v10, 64, v9")
    A("    v_lshl_add_u32 v11, v5, 3, 0")
    A("    v_add_u32 v11, 129, v11")
    A("    v_cmp_eq_u32 vcc, 2, v7")
    A("    s_nop 1")
    A("    v_cndmask_b32 v10, v10, v11, vcc")
    A("    v_subrev_u32 v12, 96, v9")
    A("    v_cmp_gt_u32 vcc, 12, v3")
    A("    s_nop 1")
    A("    v_cndmask_b32 v10, v12, v10, vcc")
    A("    v_lshl_add_u32 v13, v10, 7, v8")
    for q in range(8):
        A(f"    v_mov_b32 v{16+q}, 0")
    A("    s_and_saveexec_b64 s[60:61], vcc")
    A("    s_cbranch_execz K0_C1")
    A("    v_cmp_ne_u32 vcc, 2, v7")
    A("    v_cmp_gt_u32 s[62:63], 2, v5")
    A("    s_or_b64 vcc, vcc, s[62:63]")
    A("    s_and_b64 exec, exec, vcc")
    A("    s_cbranch_execz K0_C1")
    for q in range(8):
        A(f"    buffer_load_ushort v{16+q}, v13, s[40:43], 0 offen offset:{q*128}")
    A("K0_C1:")
    A("    s_mov_b64 exec, -1")
    A("    v_cmp_eq_u32 vcc, 2, v7")
    A("    v_cmp_eq_u32 s[62:63], 2, v5")
    A("    s_and_b64 vcc, vcc, s[62:63]")
    A("    s_and_saveexec_b64 s[60:61], vcc")
    A("    s_cbranch_execz K0_C2")
    A(f"    buffer_load_ushort v16, v8, s[40:43], 0 offen offset:{0}")
    out.pop()
    A("    v_add_u32 v14, 16384, v8")
    A("    buffer_load_ushort v16, v14, s[40:43], 0 offen")
    A("K0_C2:")
    A("    s_mov_b64 exec, -1")
    A("    v_cmp_le_u32 vcc, 12, v3")
    A("    s_and_saveexec_b64 s[60:61], vcc")
    A("    s_cbranch_execz K0_C3")
    for q in range(8):
        A(f"    buffer_load_ushort v{16+q}, v13, s[48:51], 0 offen offset:{q*128}")
    A("K0_C3:")
    A("    s_mov_b64 exec, -1")
    A("    s_waitcnt vmcnt(0)")
    for r in range(4):
        A(f"    v_lshl_or_b32 v{24+r}, v{16+2*r+1}, 16, v{16+2*r}")
    A("    v_lshlrev_b32 v14, 4, v1")
    A("    buffer_store_dwordx4 v[24:27], v14, s[52:55], 0 offen")
    A("    v_subrev_u32 v15, 12288, v14")
    A("    buffer_store_dwordx4 v[24:27], v15, s[56:59], 0 offen")
    A("K0_END:")
    A("    s_endpgm")
    kernel_desc(name, 76)

G1 = 64
CH1 = E // G1
def k1():
    name = "egnn_k1_kernel"
    kernel_begin(name)
    load_args()
    A(f"    s_cmp_ge_u32 s2, {G1}")
    A("    s_cbranch_scc1 K1_END")
    srd(24, 12, 0, E*4)
    srd(28, 22, WS_CNT, N*4)
    srd(32, 22, WS_RANK, E*4)
    A("    v_mov_b32 v1, 0")
    A("    v_lshlrev_b32 v2, 2, v0")
    for i in range(10):
        A(f"    ds_write_b32 v2, v1 offset:{i*4096}")
    A(f"    s_mul_i32 s36, s2, {CH1*4}")
    A("    v_cmp_gt_u32 vcc, 784, v0")
    A("    s_mov_b64 s[40:41], vcc")
    for i in range(9):
        A(f"    buffer_load_dword v{10+i}, v2, s[24:27], s36 offen offset:{i*4096 if i*4096 < 4096 else 0}" if i == 0 else "")
    out[:] = [x for x in out if x != ""]
    for i in range(1, 10):
        A(f"    v_add_u32 v{30+i}, {i*4096}, v2")
    for i in range(1, 10):
        A(f"    buffer_load_dword v{10+i}, v{30+i}, s[24:27], s36 offen")
    A("    s_waitcnt lgkmcnt(0)")
    A("    s_barrier")
    A("    v_mov_b32 v3, 1")
    A("    s_waitcnt vmcnt(0)")
    for i in range(10):
        if i == 9:
            A("    s_mov_b64 exec, s[40:41]")
        A(f"    v_lshlrev_b32 v{10+i}, 2, v{10+i}")
        A(f"    ds_add_rtn_u32 v{20+i}, v{10+i}, v3")
    A("    s_mov_b64 exec, -1")
    A("    s_waitcnt lgkmcnt(0)")
    A("    s_barrier")
    for j in range(10):
        if j == 9:
            A("    s_mov_b64 exec, s[40:41]")
        A(f"    ds_read_b32 v{41+j}, v2 offset:{j*4096}")
    A("    s_mov_b64 exec, -1")
    A("    s_waitcnt lgkmcnt(0)")
    for j in range(10):
        if j == 9:
            A("    s_mov_b64 exec, s[40:41]")
        va = 2 if j == 0 else 30+j
        A(f"    buffer_atomic_add v{41+j}, v{va}, s[28:31], 0 offen sc0 sc1")
    A("    s_mov_b64 exec, -1")
    A("    s_waitcnt vmcnt(0)")
    for j in range(10):
        if j == 9:
            A("    s_mov_b64 exec, s[40:41]")
        A(f"    ds_write_b32 v2, v{41+j} offset:{j*4096}")
    A("    s_mov_b64 exec, -1")
    A("    s_waitcnt lgkmcnt(0)")
    A("    s_barrier")
    for i in range(10):
        if i == 9:
            A("    s_mov_b64 exec, s[40:41]")
        A(f"    ds_read_b32 v{41+i}, v{10+i}")
    A("    s_mov_b64 exec, -1")
    A("    s_waitcnt lgkmcnt(0)")
    for i in range(10):
        if i == 9:
            A("    s_mov_b64 exec, s[40:41]")
        va = 2 if i == 0 else 30+i
        A(f"    v_add_u32 v{41+i}, v{41+i}, v{20+i}")
        A(f"    buffer_store_dword v{41+i}, v{va}, s[32:35], s36 offen")
    A("K1_END:")
    A("    s_endpgm")
    kernel_desc(name, 52)

G2 = 64
CH2 = E // G2
def k2():
    name = "egnn_k2_kernel"
    kernel_begin(name)
    load_args()
    A(f"    s_cmp_ge_u32 s2, {G2}")
    A("    s_cbranch_scc1 K2_END")
    srd(24, 22, WS_CNT, N*4)
    srd(28, 22, WS_OFF, (N+1)*4)
    srd(32, 12, 0, E*4)
    srd(36, 22, WS_RANK, E*4)
    srd(40, 10, 0, E*4)
    srd(44, 22, WS_SORT, E*8)
    A("    v_mul_u32_u24 v1, 40, v0")
    A("    buffer_load_dwordx4 v[4:7], v1, s[24:27], 0 offen")
    A("    buffer_load_dwordx4 v[8:11], v1, s[24:27], 0 offen offset:16")
    A("    buffer_load_dwordx2 v[12:13], v1, s[24:27], 0 offen offset:32")
    A("    s_waitcnt vmcnt(0)")
    A("    v_mov_b32 v14, 0")
    for k in range(1, 10):
        A(f"    v_add_u32 v{14+k}, v{14+k-1}, v{4+k-1}")
    A("    v_add_u32 v24, v23, v13")
    A("    v_mov_b32 v25, v24")
    A("    s_nop 1")
    for sh in (1, 2, 4, 8):
        A(f"    v_add_u32_dpp v25, v25, v25 row_shr:{sh} row_mask:0xf bank_mask:0xf")
        A("    s_nop 1")
    A("    v_add_u32_dpp v25, v25, v25 row_bcast:15 row_mask:0xa bank_mask:0xf")
    A("    s_nop 1")
    A("    v_add_u32_dpp v25, v25, v25 row_bcast:31 row_mask:0xc bank_mask:0xf")
    A("    s_nop 1")
    A("    v_lshrrev_b32 v26, 6, v0")
    A("    v_and_b32 v27, 63, v0")
    A("    v_cmp_eq_u32 vcc, 63, v27")
    A("    v_lshlrev_b32 v28, 2, v26")
    A("    s_and_saveexec_b64 s[48:49], vcc")
    A("    ds_write_b32 v28, v25 offset:40960")
    A("    s_mov_b64 exec, -1")
    A("    s_waitcnt lgkmcnt(0)")
    A("    s_barrier")
    A("    v_mov_b32 v29, 0")
    A("    ds_read_b128 v[32:35], v29 offset:40960")
    A("    ds_read_b128 v[36:39], v29 offset:40976")
    A("    ds_read_b128 v[40:43], v29 offset:40992")
    A("    ds_read_b128 v[44:47], v29 offset:41008")
    A("    s_waitcnt lgkmcnt(0)")
    A("    v_sub_u32 v30, v25, v24")
    for w in range(15):
        A(f"    v_cmp_lt_u32 vcc, {w}, v26")
        A("    s_nop 1")
        A(f"    v_cndmask_b32 v31, 0, v{32+w}, vcc")
        A("    v_add_u32 v30, v30, v31")
    A("    v_cmp_gt_u32 vcc, 1000, v0")
    A("    s_and_saveexec_b64 s[48:49], vcc")
    for k in range(10):
        A(f"    v_add_u32 v{14+k}, v{14+k}, v30")
        A(f"    ds_write_b32 v1, v{14+k} offset:{4*k}")
    A("    s_cmp_lg_u32 s2, 0")
    A("    s_cbranch_scc1 K2_NOOFF")
    A("    buffer_store_dwordx4 v[14:17], v1, s[28:31], 0 offen")
    A("    buffer_store_dwordx4 v[18:21], v1, s[28:31], 0 offen offset:16")
    A("    buffer_store_dwordx2 v[22:23], v1, s[28:31], 0 offen offset:32")
    A("    v_cmp_eq_u32 vcc, 999, v0")
    A("    s_and_b64 exec, exec, vcc")
    A("    v_add_u32 v31, v30, v24")
    A("    buffer_store_dword v31, v1, s[28:31], 0 offen offset:40")
    A("K2_NOOFF:")
    A("    s_mov_b64 exec, -1")
    A("    s_waitcnt lgkmcnt(0)")
    A("    s_barrier")
    A(f"    s_mul_i32 s50, s2, {CH2}")
    A("    v_cmp_gt_u32 vcc, 784, v0")
    A("    s_mov_b64 s[52:53], vcc")
    A("    v_add_u32 v2, s50, v0")
    for i in range(10):
        A(f"    v_add_u32 v{10+i}, {i*1024}, v2")
        A(f"    v_lshlrev_b32 v{20+i}, 2, v{10+i}")
    for i in range(10):
        A(f"    buffer_load_dword v{30+i}, v{20+i}, s[32:35], 0 offen")
        A(f"    buffer_load_dword v{40+i}, v{20+i}, s[36:39], 0 offen")
        A(f"    buffer_load_dword v{50+i}, v{20+i}, s[40:43], 0 offen")
    A("    s_waitcnt vmcnt(0)")
    for i in range(10):
        A(f"    v_lshlrev_b32 v{30+i}, 2, v{30+i}")
        A(f"    ds_read_b32 v{30+i}, v{30+i}")
    A("    s_waitcnt lgkmcnt(0)")
    for i in range(10):
        if i == 9:
            A("    s_mov_b64 exec, s[52:53]")
        A(f"    v_add_u32 v{30+i}, v{30+i}, v{40+i}")
        A(f"    v_lshlrev_b32 v{30+i}, 3, v{30+i}")
        A(f"    v_mov_b32 v60, v{50+i}")
        A(f"    v_mov_b32 v61, v{10+i}")
        A(f"    buffer_store_dwordx2 v[60:61], v{30+i}, s[44:47], 0 offen")
        A("    s_nop 1")
    A("K2_END:")
    A("    s_endpgm")
    kernel_desc(name, 64)

K3_WGS = 1024
NW3 = K3_WGS * 4
def k3():
    name = "egnn_k3_kernel"
    kernel_begin(name)
    load_args()
    A(f"    s_cmp_ge_u32 s2, {K3_WGS}")
    A("    s_cbranch_scc1 K3_END")
    srd(24, 22, WS_WTE, 12*1024)
    srd(28, 16, 0, 128)
    srd(32, 22, WS_SORT, E*8)
    srd(36, 4, 0, N*128)
    srd(40, 8, 0, E*32)
    srd(44, 22, WS_POS4, N*16)
    srd(48, 22, WS_P1, N*256)
    srd(52, 22, WS_MI, N*128)
    srd(56, 20, N*128, N*6)
    A(f"    s_add_u32 s60, s22, {WS_OFF:#x}")
    A("    s_addc_u32 s61, s23, 0")
    A("    v_and_b32 v1, 63, v0")
    A("    v_lshrrev_b32 v2, 6, v0")
    A("    v_and_b32 v3, 15, v1")
    A("    v_lshrrev_b32 v4, 4, v1")
    A("    v_lshlrev_b32 v5, 4, v4")
    A("    s_nop 0")
    A("    v_readfirstlane_b32 s62, v2")
    A("    s_lshl_b32 s63, s2, 2")
    A("    s_add_u32 s62, s62, s63")
    A("    v_lshlrev_b32 v6, 4, v1")
    for t in range(12):
        if t*1024 < 4096:
            A(f"    buffer_load_dwordx4 v[{64+4*t}:{64+4*t+3}], v6, s[24:27], 0 offen offset:{t*1024}")
        else:
            A(f"    v_add_u32 v7, {t*1024}, v6")
            A(f"    buffer_load_dwordx4 v[{64+4*t}:{64+4*t+3}], v7, s[24:27], 0 offen")
    A("    v_lshlrev_b32 v7, 3, v4")
    for j in range(4):
        A(f"    buffer_load_dwordx2 v[{128+2*j}:{128+2*j+1}], v7, s[28:31], 0 offen offset:{j*32}")
    A("    s_waitcnt vmcnt(0)")
    for j in range(4):
        A(f"    v_lshlrev_b32 v{112+4*j}, 16, v{128+2*j}")
        A(f"    v_and_b32 v{112+4*j+1}, 0xffff0000, v{128+2*j}")
        A(f"    v_lshlrev_b32 v{112+4*j+2}, 16, v{128+2*j+1}")
        A(f"    v_and_b32 v{112+4*j+3}, 0xffff0000, v{128+2*j+1}")
    A("K3_NODE:")
    A(f"    s_cmp_ge_u32 s62, {N}")
    A("    s_cbranch_scc1 K3_END")
    A("    s_lshl_b32 s63, s62, 2")
    A("    s_load_dwordx2 s[64:65], s[60:61], s63")
    A("    s_lshl_b32 s66, s62, 8")
    for j in range(4):
        A(f"    buffer_load_dwordx4 v[{128+4*j}:{128+4*j+3}], v5, s[48:51], s66 offen offset:{64*j}")
    A("    s_lshl_b32 s67, s62, 4")
    A("    v_mov_b32 v8, 0")
    A("    buffer_load_dwordx4 v[144:147], v8, s[44:47], s67 offen")
    for r in range(16):
        A(f"    v_mov_b32 v{32+r}, 0")
    for c in range(3):
        A(f"    v_mov_b32 v{148+c}, 0")
    A("    s_waitcnt lgkmcnt(0)")
    A("    s_mov_b32 s68, s64")
    A("K3_TILE:")
    A("    s_cmp_ge_u32 s68, s65")
    A("    s_cbranch_scc1 K3_TILE_DONE")
    A("    v_add_u32 v8, s68, v3")
    A("    v_cmp_gt_u32 s[70:71], s65, v8")
    A("    v_lshlrev_b32 v9, 3, v8")
    A("    buffer_load_dwordx2 v[10:11], v9, s[32:35], 0 offen")
    A("    s_waitcnt vmcnt(0)")
    A("    v_lshl_add_u32 v12, v10, 7, v5")
    A("    buffer_load_dwordx4 v[16:19], v12, s[36:39], 0 offen")
    A("    buffer_load_dwordx4 v[20:23], v12, s[36:39], 0 offen offset:64")
    A("    v_lshl_add_u32 v13, v11, 5, v5")
    A("    v_cmp_gt_u32 vcc, 2, v4")
    A("    s_nop 1")
    A("    v_cndmask_b32 v13, -1, v13, vcc")
    A("    buffer_load_dwordx4 v[24:27], v13, s[40:43], 0 offen")
    A("    v_lshlrev_b32 v14, 4, v10")
    A("    buffer_load_dwordx4 v[28:31], v14, s[44:47], 0 offen")
    A("    s_waitcnt vmcnt(0)")
    for c in range(3):
        A(f"    v_sub_f32 v{28+c}, v{144+c}, v{28+c}")
    A("    v_cvt_pk_bf16_f32 v15, v28, v29")
    A("    v_cvt_pk_bf16_f32 v31, v30, v30")
    A("    v_lshlrev_b32 v28, 16, v15")
    A("    v_and_b32 v29, 0xffff0000, v15")
    A("    v_lshlrev_b32 v30, 16, v31")
    A("    v_mul_f32 v152, v28, v28")
    A("    v_mul_f32 v153, v29, v29")
    A("    v_mul_f32 v154, v30, v30")
    A("    v_cvt_pk_bf16_f32 v15, v152, v153")
    A("    v_cvt_pk_bf16_f32 v31, v154, v154")
    A("    v_lshlrev_b32 v152, 16, v15")
    A("    v_and_b32 v153, 0xffff0000, v15")
    A("    v_lshlrev_b32 v154, 16, v31")
    A("    v_add_f32 v152, v152, v153")
    A("    v_add_f32 v152, v152, v154")
    A("    v_cvt_pk_bf16_f32 v15, v152, v152")
    A("    v_and_b32 v15, 0xffff, v15")
    A("    v_cmp_eq_u32 vcc, 2, v4")
    A("    s_nop 1")
    A("    v_cndmask_b32 v24, v24, v15, vcc")
    A("    s_nop 1")
    for j in range(4):
        d = 48 + 4*j
        A(f"    v_mfma_f32_16x16x32_bf16 v[{d}:{d+3}], v[{64+4*j}:{64+4*j+3}], v[16:19], v[{128+4*j}:{128+4*j+3}]")
        A(f"    v_mfma_f32_16x16x32_bf16 v[{d}:{d+3}], v[{80+4*j}:{80+4*j+3}], v[20:23], v[{d}:{d+3}]")
        A(f"    v_mfma_f32_16x16x32_bf16 v[{d}:{d+3}], v[{96+4*j}:{96+4*j+3}], v[24:27], v[{d}:{d+3}]")
    A("    s_nop 15")
    for r in range(16):
        silu(48+r, 15)
    A("    s_mov_b64 exec, s[70:71]")
    A("    v_mov_b32 v15, 0")
    for r in range(16):
        A(f"    v_add_f32 v{32+r}, v{32+r}, v{48+r}")
        A(f"    v_fmac_f32 v15, v{112+r}, v{48+r}")
    for c in range(3):
        A(f"    v_fmac_f32 v{148+c}, v{28+c}, v15")
    A("    s_mov_b64 exec, -1")
    A("    s_add_u32 s68, s68, 16")
    A("    s_branch K3_TILE")
    A("K3_TILE_DONE:")
    A("    s_waitcnt vmcnt(0)")
    for sh in (8, 4, 2, 1):
        for r in range(16):
            A(f"    v_add_f32_dpp v{32+r}, v{32+r}, v{32+r} row_ror:{sh} row_mask:0xf bank_mask:0xf")
        for c in range(3):
            A(f"    v_add_f32_dpp v{148+c}, v{148+c}, v{148+c} row_ror:{sh} row_mask:0xf bank_mask:0xf")
    A("    s_nop 1")
    for c in range(3):
        A(f"    v_add_f32_dpp v{148+c}, v{148+c}, v{148+c} row_bcast:15 row_mask:0xa bank_mask:0xf")
    A("    s_nop 1")
    for c in range(3):
        A(f"    v_add_f32_dpp v{148+c}, v{148+c}, v{148+c} row_bcast:31 row_mask:0xc bank_mask:0xf")
    for j in range(4):
        A(f"    v_cvt_pk_bf16_f32 v{48+2*j}, v{32+4*j}, v{32+4*j+1}")
        A(f"    v_cvt_pk_bf16_f32 v{48+2*j+1}, v{32+4*j+2}, v{32+4*j+3}")
    A("    v_lshlrev_b32 v8, 3, v4")
    A("    s_lshl_b32 s66, s62, 7")
    A("    v_cmp_eq_u32 vcc, 0, v3")
    A("    s_and_saveexec_b64 s[72:73], vcc")
    for j in range(4):
        A(f"    buffer_store_dwordx2 v[{48+2*j}:{48+2*j+1}], v8, s[52:55], s66 offen offset:{32*j}")
    A("    s_mov_b64 exec, -1")
    for c in range(3):
        A(f"    v_add_f32 v{148+c}, v{148+c}, v{144+c}")
    A("    v_cvt_pk_bf16_f32 v9, v148, v149")
    A("    v_cvt_pk_bf16_f32 v10, v150, v150")
    A("    v_lshrrev_b32 v11, 16, v9")
    A("    s_mul_i32 s66, s62, 6")
    A("    v_mov_b32 v8, 0")
    A("    v_cmp_eq_u32 vcc, 63, v1")
    A("    s_and_saveexec_b64 s[72:73], vcc")
    A("    buffer_store_short v9, v8, s[56:59], s66 offen")
    A("    buffer_store_short v11, v8, s[56:59], s66 offen offset:2")
    A("    buffer_store_short v10, v8, s[56:59], s66 offen offset:4")
    A("    s_mov_b64 exec, -1")
    A(f"    s_add_u32 s62, s62, {NW3}")
    A("    s_branch K3_NODE")
    A("K3_END:")
    A("    s_endpgm")
    kernel_desc(name, 160)

def k4():
    name = "egnn_k4_kernel"
    kernel_begin(name)
    load_args()
    A("    s_cmp_ge_u32 s2, 157")
    A("    s_cbranch_scc1 K4_END")
    srd(24, 22, WS_WTH, 16*1024)
    srd(28, 4, 0, N*128)
    srd(32, 22, WS_MI, N*128)
    srd(36, 20, 0, N*128)
    A("    v_and_b32 v1, 63, v0")
    A("    v_lshrrev_b32 v2, 6, v0")
    A("    v_and_b32 v3, 15, v1")
    A("    v_lshrrev_b32 v4, 4, v1")
    A("    v_lshlrev_b32 v6, 4, v1")
    for t in range(16):
        if t*1024 < 4096:
            A(f"    buffer_load_dwordx4 v[{64+4*t}:{64+4*t+3}], v6, s[24:27], 0 offen offset:{t*1024}")
        else:
            A(f"    v_add_u32 v7, {t*1024}, v6")
            A(f"    buffer_load_dwordx4 v[{64+4*t}:{64+4*t+3}], v7, s[24:27], 0 offen")
    A("    v_lshlrev_b32 v6, 6, s2")
    A("    v_lshl_add_u32 v6, v2, 4, v6")
    A("    v_add_u32 v6, v6, v3")
    A("    v_lshlrev_b32 v7, 7, v6")
    A("    v_lshl_add_u32 v8, v4, 4, v7")
    A("    buffer_load_dwordx4 v[16:19], v8, s[28:31], 0 offen")
    A("    buffer_load_dwordx4 v[20:23], v8, s[28:31], 0 offen offset:64")
    A("    buffer_load_dwordx4 v[24:27], v8, s[32:35], 0 offen")
    A("    buffer_load_dwordx4 v[28:31], v8, s[32:35], 0 offen offset:64")
    A("    v_lshl_add_u32 v9, v4, 3, v7")
    for j in range(4):
        A(f"    buffer_load_dwordx2 v[{32+2*j}:{32+2*j+1}], v9, s[28:31], 0 offen offset:{32*j}")
    A("    s_waitcnt vmcnt(0)")
    for j in range(4):
        d = 48 + 4*j
        for s in range(4):
            c = "0" if s == 0 else f"v[{d}:{d+3}]"
            A(f"    v_mfma_f32_16x16x32_bf16 v[{d}:{d+3}], v[{64+16*s+4*j}:{64+16*s+4*j+3}], v[{16+4*s}:{16+4*s+3}], {c}")
    A("    s_nop 15")
    for r in range(16):
        silu(48+r, 15)
    for j in range(4):
        A(f"    v_cvt_pk_bf16_f32 v40, v{48+4*j}, v{48+4*j+1}")
        A(f"    v_cvt_pk_bf16_f32 v41, v{48+4*j+2}, v{48+4*j+3}")
        A(f"    v_lshlrev_b32 v42, 16, v40")
        A(f"    v_and_b32 v43, 0xffff0000, v40")
        A(f"    v_lshlrev_b32 v44, 16, v41")
        A(f"    v_and_b32 v45, 0xffff0000, v41")
        A(f"    v_lshlrev_b32 v46, 16, v{32+2*j}")
        A(f"    v_add_f32 v42, v42, v46")
        A(f"    v_and_b32 v46, 0xffff0000, v{32+2*j}")
        A(f"    v_add_f32 v43, v43, v46")
        A(f"    v_lshlrev_b32 v46, 16, v{32+2*j+1}")
        A(f"    v_add_f32 v44, v44, v46")
        A(f"    v_and_b32 v46, 0xffff0000, v{32+2*j+1}")
        A(f"    v_add_f32 v45, v45, v46")
        A(f"    v_cvt_pk_bf16_f32 v{10+2*j}, v42, v43")
        A(f"    v_cvt_pk_bf16_f32 v{10+2*j+1}, v44, v45")
    for j in range(4):
        A(f"    buffer_store_dwordx2 v[{10+2*j}:{10+2*j+1}], v9, s[36:39], 0 offen offset:{32*j}")
    A("K4_END:")
    A("    s_endpgm")
    kernel_desc(name, 128)

hdr = open("gather_scatter__cheap_equivariant_egnn__graph.s.ref").read().split("; @launch")[0]
A(hdr.rstrip("\n"))
A("; @launch kernel=egnn_k0_kernel grid=(157,1,1) block=(256,1,1) lds=0")
A(f"; @launch kernel=egnn_k1_kernel grid=({G1},1,1) block=(1024,1,1) lds=40960")
A(f"; @launch kernel=egnn_k2_kernel grid=({G2},1,1) block=(1024,1,1) lds=41024")
A(f"; @launch kernel=egnn_k3_kernel grid=({K3_WGS},1,1) block=(256,1,1) lds=0")
A("; @launch kernel=egnn_k4_kernel grid=(157,1,1) block=(256,1,1) lds=0")
A('.amdgcn_target "amdgcn-amd-amdhsa--gfx950"')
A(".text")
k0(); k1(); k2(); k3(); k4()
A('.section .rodata,"a"')
for d in descs:
    A(d)
open("gather_scatter__cheap_equivariant_egnn__graph.s", "w").write("\n".join(out) + "\n")
```

```python
import sys

N = 10000
E = 640000
WS_CNT  = 0
WS_RANK = 0x10000
WS_OFF  = 0x290000
WS_SORT = 0x2A0000
WS_POS4 = 0x790000
WS_MI   = 0x7C0000
WS_P1   = 0xA40000
WS_WTE  = 0xCC0000
WS_WTH  = 0xCC4000

out = []
def A(s=""):
    out.append(s)

def srd(dst, ptr, off, size):
    if off:
        A(f"    s_add_u32 s{dst}, s{ptr}, {off:#x}")
        A(f"    s_addc_u32 s{dst+1}, s{ptr+1}, 0")
    else:
        A(f"    s_mov_b32 s{dst}, s{ptr}")
        A(f"    s_mov_b32 s{dst+1}, s{ptr+1}")
    A(f"    s_mov_b32 s{dst+2}, {size}")
    A(f"    s_mov_b32 s{dst+3}, 0x00020000")

def kernel_begin(name):
    A(f".globl {name}")
    A(".p2align 8")
    A(f".type {name},@function")
    A(f"{name}:")

descs = []
def kernel_desc(name, vgpr, sgpr=96):
    acc = (vgpr + 3) // 4 * 4
    descs.append(f""".p2align 6
.amdhsa_kernel {name}
  .amdhsa_next_free_vgpr {vgpr}
  .amdhsa_next_free_sgpr {sgpr}
  .amdhsa_accum_offset {acc}
  .amdhsa_group_segment_fixed_size 0
  .amdhsa_kernarg_size 88
  .amdhsa_user_sgpr_count 2
  .amdhsa_user_sgpr_kernarg_segment_ptr 1
  .amdhsa_system_sgpr_workgroup_id_x 1
.end_amdhsa_kernel""")

def load_args():
    A("    s_load_dwordx16 s[4:19], s[0:1], 0")
    A("    s_load_dwordx2 s[20:21], s[0:1], 64")
    A("    s_load_dwordx2 s[22:23], s[0:1], 80")
    A("    s_waitcnt lgkmcnt(0)")

LOG2E_NEG = "0xbfb8aa3b"

def silu(x, t):
    A(f"    v_mul_f32 v{t}, {LOG2E_NEG}, v{x}")
    A(f"    v_exp_f32 v{t}, v{t}")
    A(f"    s_nop 0")
    A(f"    v_add_f32 v{t}, 1.0, v{t}")
    A(f"    v_rcp_f32 v{t}, v{t}")
    A(f"    s_nop 0")
    A(f"    v_mul_f32 v{x}, v{x}, v{t}")

def k0():
    name = "egnn_k0_kernel"
    kernel_begin(name)
    load_args()
    A("    s_cmp_ge_u32 s2, 157")
    A("    s_cbranch_scc1 K0_END")
    srd(24, 6, 0, N*6)
    srd(28, 22, WS_CNT, N*4)
    srd(32, 22, WS_POS4, N*16)
    srd(36, 4, 0, N*128)
    srd(40, 14, 0, 145*128)
    srd(44, 22, WS_P1, N*256)
    srd(48, 18, 0, 128*128)
    srd(52, 22, WS_WTE, 12*1024)
    srd(56, 22, WS_WTH, 16*1024)
    A("    v_lshlrev_b32 v1, 6, s2")
    A("    v_add_u32 v1, v1, v0")
    A("    v_cmp_gt_u32 vcc, 64, v0")
    A("    s_and_saveexec_b64 s[60:61], vcc")
    A("    s_cbranch_execz K0_A_DONE")
    A("    v_mul_u32_u24 v2, 6, v1")
    A("    buffer_load_ushort v4, v2, s[24:27], 0 offen")
    A("    buffer_load_ushort v5, v2, s[24:27], 0 offen offset:2")
    A("    buffer_load_ushort v6, v2, s[24:27], 0 offen offset:4")
    A("    v_mov_b32 v7, 0")
    A("    v_lshlrev_b32 v3, 2, v1")
    A("    buffer_store_dword v7, v3, s[28:31], 0 offen")
    A("    v_lshlrev_b32 v3, 4, v1")
    A("    s_waitcnt vmcnt(1)")
    A("    v_lshlrev_b32 v4, 16, v4")
    A("    v_lshlrev_b32 v5, 16, v5")
    A("    v_lshlrev_b32 v6, 16, v6")
    A("    buffer_store_dwordx4 v[4:7], v3, s[32:35], 0 offen")
    A("K0_A_DONE:")
    A("    s_mov_b64 exec, -1")
    A("    v_and_b32 v1, 63, v0")
    A("    v_lshrrev_b32 v2, 6, v0")
    A("    v_and_b32 v3, 15, v1")
    A("    v_lshrrev_b32 v4, 4, v1")
    A("    v_lshlrev_b32 v5, 10, v4")
    A("    v_lshl_add_u32 v5, v3, 1, v5")
    A("    v_add_u32 v72, 4096, v5")
    for s in range(2):
        for j in range(4):
            for q in range(8):
                off = q*128 + j*32
                A(f"    buffer_load_ushort v{48+q}, v5, s[40:43], {4096*s} offen offset:{off}" if s == 0 else f"    buffer_load_ushort v{48+q}, v72, s[40:43], 0 offen offset:{off}")
            A("    s_waitcnt vmcnt(0)")
            b = 16 + (s*4+j)*4
            for r in range(4):
                A(f"    v_lshl_or_b32 v{b+r}, v{48+2*r+1}, 16, v{48+2*r}")
    A("    v_lshlrev_b32 v6, 6, s2")
    A("    v_lshl_add_u32 v6, v2, 4, v6")
    A("    v_add_u32 v6, v6, v3")
    A("    v_lshlrev_b32 v7, 7, v6")
    A("    v_lshl_add_u32 v7, v4, 4, v7")
    A("    buffer_load_dwordx4 v[8:11], v7, s[36:39], 0 offen")
    A("    buffer_load_dwordx4 v[12:15], v7, s[36:39], 0 offen offset:64")
    A("    s_waitcnt vmcnt(0)")
    for j in range(4):
        d = 56 + 4*j
        A(f"    v_mfma_f32_16x16x32_bf16 v[{d}:{d+3}], v[{16+j*4}:{16+j*4+3}], v[8:11], 0")
        A(f"    v_mfma_f32_16x16x32_bf16 v[{d}:{d+3}], v[{32+j*4}:{32+j*4+3}], v[12:15], v[{d}:{d+3}]")
    A("    s_nop 15")
    A("    v_lshlrev_b32 v7, 8, v6")
    A("    v_lshl_add_u32 v7, v4, 4, v7")
    for j in range(4):
        d = 56 + 4*j
        A(f"    buffer_store_dwordx4 v[{d}:{d+3}], v7, s[44:47], 0 offen offset:{j*64}")
    A("    s_cmp_ge_u32 s2, 7")
    A("    s_cbranch_scc1 K0_END")
    A("    v_lshlrev_b32 v1, 8, s2")
    A("    v_add_u32 v1, v1, v0")
    A("    v_and_b32 v2, 63, v1")
    A("    v_lshrrev_b32 v3, 6, v1")
    A("    v_and_b32 v4, 15, v2")
    A("    v_lshrrev_b32 v5, 4, v2")
    A("    v_and_b32 v6, 3, v3")
    A("    v_lshrrev_b32 v7, 2, v3")
    A("    v_lshl_add_u32 v8, v6, 4, v4")
    A("    v_lshlrev_b32 v8, 1, v8")
    A("    v_lshlrev_b32 v9, 5, v7")
    A("    v_lshl_add_u32 v9, v5, 3, v9")
    A("    v_add_u32 v10, 64, v9")
    A("    v_lshl_add_u32 v11, v5, 3, 0")
    A("    v_add_u32 v11, 129, v11")
    A("    v_cmp_eq_u32 vcc, 2, v7")
    A("    s_nop 1")
    A("    v_cndmask_b32 v10, v10, v11, vcc")
    A("    v_subrev_u32 v12, 96, v9")
    A("    v_cmp_gt_u32 vcc, 12, v3")
    A("    s_nop 1")
    A("    v_cndmask_b32 v10, v12, v10, vcc")
    A("    v_lshl_add_u32 v13, v10, 7, v8")
    for q in range(8):
        A(f"    v_mov_b32 v{16+q}, 0")
    A("    s_and_saveexec_b64 s[60:61], vcc")
    A("    s_cbranch_execz K0_C1")
    A("    v_cmp_ne_u32 vcc, 2, v7")
    A("    v_cmp_gt_u32 s[62:63], 2, v5")
    A("    s_or_b64 vcc, vcc, s[62:63]")
    A("    s_and_b64 exec, exec, vcc")
    A("    s_cbranch_execz K0_C1")
    for q in range(8):
        A(f"    buffer_load_ushort v{16+q}, v13, s[40:43], 0 offen offset:{q*128}")
    A("K0_C1:")
    A("    s_mov_b64 exec, -1")
    A("    v_cmp_eq_u32 vcc, 2, v7")
    A("    v_cmp_eq_u32 s[62:63], 2, v5")
    A("    s_and_b64 vcc, vcc, s[62:63]")
    A("    s_and_saveexec_b64 s[60:61], vcc")
    A("    s_cbranch_execz K0_C2")
    A(f"    buffer_load_ushort v16, v8, s[40:43], 0 offen offset:{0}")
    out.pop()
    A("    v_add_u32 v14, 16384, v8")
    A("    buffer_load_ushort v16, v14, s[40:43], 0 offen")
    A("K0_C2:")
    A("    s_mov_b64 exec, -1")
    A("    v_cmp_le_u32 vcc, 12, v3")
    A("    s_and_saveexec_b64 s[60:61], vcc")
    A("    s_cbranch_execz K0_C3")
    for q in range(8):
        A(f"    buffer_load_ushort v{16+q}, v13, s[48:51], 0 offen offset:{q*128}")
    A("K0_C3:")
    A("    s_mov_b64 exec, -1")
    A("    s_waitcnt vmcnt(0)")
    for r in range(4):
        A(f"    v_lshl_or_b32 v{24+r}, v{16+2*r+1}, 16, v{16+2*r}")
    A("    v_lshlrev_b32 v14, 4, v1")
    A("    buffer_store_dwordx4 v[24:27], v14, s[52:55], 0 offen")
    A("    v_subrev_u32 v15, 12288, v14")
    A("    buffer_store_dwordx4 v[24:27], v15, s[56:59], 0 offen")
    A("K0_END:")
    A("    s_endpgm")
    kernel_desc(name, 76)

G1 = 64
CH1 = E // G1
def k1():
    name = "egnn_k1_kernel"
    kernel_begin(name)
    load_args()
    A(f"    s_cmp_ge_u32 s2, {G1}")
    A("    s_cbranch_scc1 K1_END")
    srd(24, 12, 0, E*4)
    srd(28, 22, WS_CNT, N*4)
    srd(32, 22, WS_RANK, E*4)
    A("    v_mov_b32 v1, 0")
    A("    v_lshlrev_b32 v2, 2, v0")
    for i in range(10):
        A(f"    ds_write_b32 v2, v1 offset:{i*4096}")
    A(f"    s_mul_i32 s36, s2, {CH1*4}")
    A("    v_cmp_gt_u32 vcc, 784, v0")
    A("    s_mov_b64 s[40:41], vcc")
    for i in range(9):
        A(f"    buffer_load_dword v{10+i}, v2, s[24:27], s36 offen offset:{i*4096 if i*4096 < 4096 else 0}" if i == 0 else "")
    out[:] = [x for x in out if x != ""]
    for i in range(1, 10):
        A(f"    v_add_u32 v{30+i}, {i*4096}, v2")
    for i in range(1, 10):
        A(f"    buffer_load_dword v{10+i}, v{30+i}, s[24:27], s36 offen")
    A("    s_waitcnt lgkmcnt(0)")
    A("    s_barrier")
    A("    v_mov_b32 v3, 1")
    A("    s_waitcnt vmcnt(0)")
    for i in range(10):
        if i == 9:
            A("    s_mov_b64 exec, s[40:41]")
        A(f"    v_lshlrev_b32 v{10+i}, 2, v{10+i}")
        A(f"    ds_add_rtn_u32 v{20+i}, v{10+i}, v3")
    A("    s_mov_b64 exec, -1")
    A("    s_waitcnt lgkmcnt(0)")
    A("    s_barrier")
    for j in range(10):
        if j == 9:
            A("    s_mov_b64 exec, s[40:41]")
        A(f"    ds_read_b32 v{41+j}, v2 offset:{j*4096}")
    A("    s_mov_b64 exec, -1")
    A("    s_waitcnt lgkmcnt(0)")
    for j in range(10):
        if j == 9:
            A("    s_mov_b64 exec, s[40:41]")
        va = 2 if j == 0 else 30+j
        A(f"    buffer_atomic_add v{41+j}, v{va}, s[28:31], 0 offen sc0 sc1")
    A("    s_mov_b64 exec, -1")
    A("    s_waitcnt vmcnt(0)")
    for j in range(10):
        if j == 9:
            A("    s_mov_b64 exec, s[40:41]")
        A(f"    ds_write_b32 v2, v{41+j} offset:{j*4096}")
    A("    s_mov_b64 exec, -1")
    A("    s_waitcnt lgkmcnt(0)")
    A("    s_barrier")
    for i in range(10):
        if i == 9:
            A("    s_mov_b64 exec, s[40:41]")
        A(f"    ds_read_b32 v{41+i}, v{10+i}")
    A("    s_mov_b64 exec, -1")
    A("    s_waitcnt lgkmcnt(0)")
    for i in range(10):
        if i == 9:
            A("    s_mov_b64 exec, s[40:41]")
        va = 2 if i == 0 else 30+i
        A(f"    v_add_u32 v{41+i}, v{41+i}, v{20+i}")
        A(f"    buffer_store_dword v{41+i}, v{va}, s[32:35], s36 offen")
    A("K1_END:")
    A("    s_endpgm")
    kernel_desc(name, 52)

G2 = 64
CH2 = E // G2
def k2():
    name = "egnn_k2_kernel"
    kernel_begin(name)
    load_args()
    A(f"    s_cmp_ge_u32 s2, {G2}")
    A("    s_cbranch_scc1 K2_END")
    srd(24, 22, WS_CNT, N*4)
    srd(28, 22, WS_OFF, (N+1)*4)
    srd(32, 12, 0, E*4)
    srd(36, 22, WS_RANK, E*4)
    srd(40, 10, 0, E*4)
    srd(44, 22, WS_SORT, E*8)
    A("    v_mul_u32_u24 v1, 40, v0")
    A("    buffer_load_dwordx4 v[4:7], v1, s[24:27], 0 offen")
    A("    buffer_load_dwordx4 v[8:11], v1, s[24:27], 0 offen offset:16")
    A("    buffer_load_dwordx2 v[12:13], v1, s[24:27], 0 offen offset:32")
    A("    s_waitcnt vmcnt(0)")
    A("    v_mov_b32 v14, 0")
    for k in range(1, 10):
        A(f"    v_add_u32 v{14+k}, v{14+k-1}, v{4+k-1}")
    A("    v_add_u32 v24, v23, v13")
    A("    v_mov_b32 v25, v24")
    A("    s_nop 1")
    for sh in (1, 2, 4, 8):
        A(f"    v_add_u32_dpp v25, v25, v25 row_shr:{sh} row_mask:0xf bank_mask:0xf")
        A("    s_nop 1")
    A("    v_add_u32_dpp v25, v25, v25 row_bcast:15 row_mask:0xa bank_mask:0xf")
    A("    s_nop 1")
    A("    v_add_u32_dpp v25, v25, v25 row_bcast:31 row_mask:0xc bank_mask:0xf")
    A("    s_nop 1")
    A("    v_lshrrev_b32 v26, 6, v0")
    A("    v_and_b32 v27, 63, v0")
    A("    v_cmp_eq_u32 vcc, 63, v27")
    A("    v_lshlrev_b32 v28, 2, v26")
    A("    s_and_saveexec_b64 s[48:49], vcc")
    A("    ds_write_b32 v28, v25 offset:40960")
    A("    s_mov_b64 exec, -1")
    A("    s_waitcnt lgkmcnt(0)")
    A("    s_barrier")
    A("    v_mov_b32 v29, 0")
    A("    ds_read_b128 v[32:35], v29 offset:40960")
    A("    ds_read_b128 v[36:39], v29 offset:40976")
    A("    ds_read_b128 v[40:43], v29 offset:40992")
    A("    ds_read_b128 v[44:47], v29 offset:41008")
    A("    s_waitcnt lgkmcnt(0)")
    A("    v_sub_u32 v30, v25, v24")
    for w in range(15):
        A(f"    v_cmp_lt_u32 vcc, {w}, v26")
        A("    s_nop 1")
        A(f"    v_cndmask_b32 v31, 0, v{32+w}, vcc")
        A("    v_add_u32 v30, v30, v31")
    A("    v_cmp_gt_u32 vcc, 1000, v0")
    A("    s_and_saveexec_b64 s[48:49], vcc")
    for k in range(10):
        A(f"    v_add_u32 v{14+k}, v{14+k}, v30")
        A(f"    ds_write_b32 v1, v{14+k} offset:{4*k}")
    A("    s_cmp_lg_u32 s2, 0")
    A("    s_cbranch_scc1 K2_NOOFF")
    A("    buffer_store_dwordx4 v[14:17], v1, s[28:31], 0 offen")
    A("    buffer_store_dwordx4 v[18:21], v1, s[28:31], 0 offen offset:16")
    A("    buffer_store_dwordx2 v[22:23], v1, s[28:31], 0 offen offset:32")
    A("    v_cmp_eq_u32 vcc, 999, v0")
    A("    s_and_b64 exec, exec, vcc")
    A("    v_add_u32 v31, v30, v24")
    A("    buffer_store_dword v31, v1, s[28:31], 0 offen offset:40")
    A("K2_NOOFF:")
    A("    s_mov_b64 exec, -1")
    A("    s_waitcnt lgkmcnt(0)")
    A("    s_barrier")
    A(f"    s_mul_i32 s50, s2, {CH2}")
    A("    v_cmp_gt_u32 vcc, 784, v0")
    A("    s_mov_b64 s[52:53], vcc")
    A("    v_add_u32 v2, s50, v0")
    for i in range(10):
        A(f"    v_add_u32 v{10+i}, {i*1024}, v2")
        A(f"    v_lshlrev_b32 v{20+i}, 2, v{10+i}")
    for i in range(10):
        A(f"    buffer_load_dword v{30+i}, v{20+i}, s[32:35], 0 offen")
        A(f"    buffer_load_dword v{40+i}, v{20+i}, s[36:39], 0 offen")
        A(f"    buffer_load_dword v{50+i}, v{20+i}, s[40:43], 0 offen")
    A("    s_waitcnt vmcnt(0)")
    for i in range(10):
        A(f"    v_lshlrev_b32 v{30+i}, 2, v{30+i}")
        A(f"    ds_read_b32 v{30+i}, v{30+i}")
    A("    s_waitcnt lgkmcnt(0)")
    for i in range(10):
        if i == 9:
            A("    s_mov_b64 exec, s[52:53]")
        A(f"    v_add_u32 v{30+i}, v{30+i}, v{40+i}")
        A(f"    v_lshlrev_b32 v{30+i}, 3, v{30+i}")
        A(f"    v_mov_b32 v60, v{50+i}")
        A(f"    v_mov_b32 v61, v{10+i}")
        A(f"    buffer_store_dwordx2 v[60:61], v{30+i}, s[44:47], 0 offen")
        A("    s_nop 1")
    A("K2_END:")
    A("    s_endpgm")
    kernel_desc(name, 64)

K3_WGS = 512
NW3 = K3_WGS * 4
def k3():
    name = "egnn_k3_kernel"
    kernel_begin(name)
    load_args()
    A(f"    s_cmp_ge_u32 s2, {K3_WGS}")
    A("    s_cbranch_scc1 K3_END")
    srd(24, 22, WS_WTE, 12*1024)
    srd(28, 16, 0, 128)
    srd(32, 22, WS_SORT, E*8)
    srd(36, 4, 0, N*128)
    srd(40, 8, 0, E*32)
    srd(44, 22, WS_POS4, N*16)
    srd(48, 22, WS_P1, N*256)
    srd(52, 22, WS_MI, N*128)
    srd(56, 20, N*128, N*6)
    A(f"    s_add_u32 s60, s22, {WS_OFF:#x}")
    A("    s_addc_u32 s61, s23, 0")
    A("    v_and_b32 v1, 63, v0")
    A("    v_lshrrev_b32 v2, 6, v0")
    A("    v_and_b32 v3, 15, v1")
    A("    v_lshrrev_b32 v4, 4, v1")
    A("    v_lshlrev_b32 v5, 4, v4")
    A("    v_lshlrev_b32 v6, 3, v4")
    A("    v_mov_b32 v7, 0")
    A("    v_cmp_gt_u32 s[74:75], 2, v4")
    A("    v_cmp_eq_u32 s[76:77], 2, v4")
    A("    v_cmp_eq_u32 s[78:79], 0, v3")
    A("    v_cmp_eq_u32 s[80:81], 63, v1")
    A("    v_readfirstlane_b32 s62, v2")
    A("    s_lshl_b32 s63, s2, 2")
    A("    s_add_u32 s62, s62, s63")
    A("    s_lshl_b32 s63, s62, 2")
    A("    s_load_dwordx2 s[84:85], s[60:61], s63")
    A(f"    s_add_u32 s63, s63, {NW3*4}")
    A("    s_load_dwordx2 s[82:83], s[60:61], s63")
    A("    v_lshlrev_b32 v8, 4, v1")
    for t in range(12):
        if t*1024 < 4096:
            A(f"    buffer_load_dwordx4 v[{64+4*t}:{64+4*t+3}], v8, s[24:27], 0 offen offset:{t*1024}")
        else:
            A(f"    v_add_u32 v9, {t*1024}, v8")
            A(f"    buffer_load_dwordx4 v[{64+4*t}:{64+4*t+3}], v9, s[24:27], 0 offen")
    for j in range(4):
        A(f"    buffer_load_dwordx2 v[{48+2*j}:{48+2*j+1}], v6, s[28:31], 0 offen offset:{j*32}")
    A("    s_waitcnt vmcnt(0)")
    for j in range(4):
        A(f"    v_lshlrev_b32 v{112+4*j}, 16, v{48+2*j}")
        A(f"    v_and_b32 v{112+4*j+1}, 0xffff0000, v{48+2*j}")
        A(f"    v_lshlrev_b32 v{112+4*j+2}, 16, v{48+2*j+1}")
        A(f"    v_and_b32 v{112+4*j+3}, 0xffff0000, v{48+2*j+1}")
    for r in range(16):
        A(f"    v_mov_b32 v{32+r}, 0")
    for c in range(3):
        A(f"    v_mov_b32 v{28+c}, 0")
    A("    s_waitcnt lgkmcnt(0)")
    A("    s_mov_b32 s70, s62")
    A("    s_mov_b32 s71, s84")
    A("    s_mov_b32 s72, s85")

    BUF = lambda p: 128 + 56*p
    H0 = lambda p, tt: BUF(p) + 16*tt
    H1 = lambda p, tt: BUF(p) + 16*tt + 4
    AT = lambda p, tt: BUF(p) + 16*tt + 8
    PS = lambda p, tt: BUF(p) + 16*tt + 12
    P1C = lambda p: BUF(p) + 32
    PN = lambda p: BUF(p) + 48
    IDX = lambda p: BUF(p) + 52
    uid = [0]

    def gen_item():
        uid[0] += 1
        u = uid[0]
        A("    s_mov_b32 s64, s67\n    s_mov_b32 s65, s68\n    s_mov_b32 s66, s69")
        A("    s_mov_b32 s67, s70\n    s_mov_b32 s68, s71\n    s_mov_b32 s69, s72")
        A("    s_add_u32 s71, s71, 32")
        A("    s_cmp_lt_u32 s71, s72")
        A(f"    s_cbranch_scc1 K3_GI{u}")
        A(f"    s_add_u32 s70, s70, {NW3}")
        A("    s_waitcnt lgkmcnt(0)")
        A("    s_mov_b32 s71, s82")
        A("    s_mov_b32 s72, s83")
        A(f"    s_cmp_lt_u32 s70, {N}")
        A(f"    s_cbranch_scc1 K3_GV{u}")
        A(f"    s_mov_b32 s70, {N}")
        A("    s_mov_b32 s71, 0")
        A("    s_mov_b32 s72, 0")
        A(f"K3_GV{u}:")
        A(f"    s_add_u32 s63, s70, {NW3}")
        A(f"    s_min_u32 s63, s63, {N-1}")
        A("    s_lshl_b32 s63, s63, 2")
        A("    s_load_dwordx2 s[82:83], s[60:61], s63")
        A(f"K3_GI{u}:")

    def issue_idx(p):
        A("    v_add_u32 v8, s71, v3")
        A("    v_lshlrev_b32 v8, 3, v8")
        A(f"    buffer_load_dwordx2 v[{IDX(p)}:{IDX(p)+1}], v8, s[32:35], 0 offen")
        A(f"    buffer_load_dwordx2 v[{IDX(p)+2}:{IDX(p)+3}], v8, s[32:35], 0 offen offset:128")

    def issue_gather(p, nreg):
        for tt in range(2):
            sv, ev = IDX(p)+2*tt, IDX(p)+2*tt+1
            A(f"    v_lshl_add_u32 v8, v{sv}, 7, v5")
            A(f"    buffer_load_dwordx4 v[{H0(p,tt)}:{H0(p,tt)+3}], v8, s[36:39], 0 offen")
            A(f"    buffer_load_dwordx4 v[{H1(p,tt)}:{H1(p,tt)+3}], v8, s[36:39], 0 offen offset:64")
            A(f"    v_lshl_add_u32 v9, v{ev}, 5, v5")
            A(f"    v_cndmask_b32 v9, -1, v9, s[74:75]")
            A(f"    buffer_load_dwordx4 v[{AT(p,tt)}:{AT(p,tt)+3}], v9, s[40:43], 0 offen")
            A(f"    v_lshlrev_b32 v10, 4, v{sv}")
            A(f"    buffer_load_dwordx4 v[{PS(p,tt)}:{PS(p,tt)+3}], v10, s[44:47], 0 offen")
        A(f"    s_lshl_b32 s73, s{nreg}, 8")
        for j in range(4):
            A(f"    buffer_load_dwordx4 v[{P1C(p)+4*j}:{P1C(p)+4*j+3}], v5, s[48:51], s73 offen offset:{64*j}")
        A(f"    s_lshl_b32 s73, s{nreg}, 4")
        A(f"    buffer_load_dwordx4 v[{PN(p)}:{PN(p)+3}], v7, s[44:47], s73 offen")

    def compute(p):
        uid[0] += 1
        u = uid[0]
        for tt in range(2):
            if tt == 1:
                A("    s_add_u32 s73, s65, 16")
                A("    s_cmp_ge_u32 s73, s66")
                A(f"    s_cbranch_scc1 K3_SKIP{u}")
            ps = PS(p, tt); pn = PN(p); at = AT(p, tt)
            A(f"    v_add_u32 v8, s65, v3")
            if tt: A("    v_add_u32 v8, 16, v8")
            A("    v_cmp_gt_u32 s[86:87], s66, v8")
            for c in range(3):
                A(f"    v_sub_f32 v{16+c}, v{pn+c}, v{ps+c}")
            A("    v_cvt_pk_bf16_f32 v15, v16, v17")
            A("    v_cvt_pk_bf16_f32 v19, v18, v18")
            A("    v_lshlrev_b32 v16, 16, v15")
            A("    v_and_b32 v17, 0xffff0000, v15")
            A("    v_lshlrev_b32 v18, 16, v19")
            A("    v_mul_f32 v20, v16, v16")
            A("    v_mul_f32 v21, v17, v17")
            A("    v_mul_f32 v22, v18, v18")
            A("    v_cvt_pk_bf16_f32 v15, v20, v21")
            A("    v_cvt_pk_bf16_f32 v19, v22, v22")
            A("    v_lshlrev_b32 v20, 16, v15")
            A("    v_and_b32 v21, 0xffff0000, v15")
            A("    v_lshlrev_b32 v22, 16, v19")
            A("    v_add_f32 v20, v20, v21")
            A("    v_add_f32 v20, v20, v22")
            A("    v_cvt_pk_bf16_f32 v15, v20, v20")
            A("    v_and_b32 v15, 0xffff, v15")
            A(f"    v_cndmask_b32 v{at}, v{at}, v15, s[76:77]")
            for j in range(4):
                d = 48 + 4*j
                A(f"    v_mfma_f32_16x16x32_bf16 v[{d}:{d+3}], v[{64+4*j}:{64+4*j+3}], v[{H0(p,tt)}:{H0(p,tt)+3}], v[{P1C(p)+4*j}:{P1C(p)+4*j+3}]")
            for j in range(4):
                d = 48 + 4*j
                A(f"    v_mfma_f32_16x16x32_bf16 v[{d}:{d+3}], v[{80+4*j}:{80+4*j+3}], v[{H1(p,tt)}:{H1(p,tt)+3}], v[{d}:{d+3}]")
            for j in range(4):
                d = 48 + 4*j
                A(f"    v_mfma_f32_16x16x32_bf16 v[{d}:{d+3}], v[{96+4*j}:{96+4*j+3}], v[{at}:{at+3}], v[{d}:{d+3}]")
            A("    s_nop 4")
            for r in range(16):
                t = 20 + (r % 8)
                A(f"    v_mul_f32 v{t}, {LOG2E_NEG}, v{48+r}")
                A(f"    v_exp_f32 v{t}, v{t}")
            out[-32:] = []
            for half in range(2):
                for r in range(8):
                    A(f"    v_mul_f32 v{20+r}, {LOG2E_NEG}, v{48+8*half+r}")
                for r in range(8):
                    A(f"    v_exp_f32 v{20+r}, v{20+r}")
                for r in range(8):
                    A(f"    v_add_f32 v{20+r}, 1.0, v{20+r}")
                for r in range(8):
                    A(f"    v_rcp_f32 v{20+r}, v{20+r}")
                for r in range(8):
                    A(f"    v_mul_f32 v{48+8*half+r}, v{48+8*half+r}, v{20+r}")
            A("    s_mov_b64 exec, s[86:87]")
            A("    v_mov_b32 v15, 0")
            for r in range(16):
                A(f"    v_add_f32 v{32+r}, v{32+r}, v{48+r}")
                A(f"    v_fmac_f32 v15, v{112+r}, v{48+r}")
            for c in range(3):
                A(f"    v_fmac_f32 v{28+c}, v{16+c}, v15")
            A("    s_mov_b64 exec, -1")
        A(f"K3_SKIP{u}:")
        A("    s_add_u32 s73, s65, 32")
        A("    s_cmp_lt_u32 s73, s66")
        A(f"    s_cbranch_scc1 K3_NOFIN{u}")
        for sh in (8, 4, 2, 1):
            for r in range(16):
                A(f"    v_add_f32_dpp v{32+r}, v{32+r}, v{32+r} row_ror:{sh} row_mask:0xf bank_mask:0xf")
            for c in range(3):
                A(f"    v_add_f32_dpp v{28+c}, v{28+c}, v{28+c} row_ror:{sh} row_mask:0xf bank_mask:0xf")
        A("    s_nop 1")
        for c in range(3):
            A(f"    v_add_f32_dpp v{28+c}, v{28+c}, v{28+c} row_bcast:15 row_mask:0xa bank_mask:0xf")
        A("    s_nop 1")
        for c in range(3):
            A(f"    v_add_f32_dpp v{28+c}, v{28+c}, v{28+c} row_bcast:31 row_mask:0xc bank_mask:0xf")
        for j in range(4):
            A(f"    v_cvt_pk_bf16_f32 v{48+2*j}, v{32+4*j}, v{32+4*j+1}")
            A(f"    v_cvt_pk_bf16_f32 v{48+2*j+1}, v{32+4*j+2}, v{32+4*j+3}")
        for c in range(3):
            A(f"    v_add_f32 v{28+c}, v{28+c}, v{PN(p)+c}")
        A("    v_cvt_pk_bf16_f32 v56, v28, v29")
        A("    v_cvt_pk_bf16_f32 v57, v30, v30")
        A("    v_lshrrev_b32 v58, 16, v56")
        A("    s_lshl_b32 s73, s64, 7")
        A("    s_mov_b64 exec, s[78:79]")
        for j in range(4):
            A(f"    buffer_store_dwordx2 v[{48+2*j}:{48+2*j+1}], v6, s[52:55], s73 offen offset:{32*j}")
        A("    s_mul_i32 s73, s64, 6")
        A("    s_mov_b64 exec, s[80:81]")
        A("    buffer_store_short v56, v7, s[56:59], s73 offen")
        A("    buffer_store_short v58, v7, s[56:59], s73 offen offset:2")
        A("    buffer_store_short v57, v7, s[56:59], s73 offen offset:4")
        A("    s_mov_b64 exec, -1")
        for r in range(16):
            A(f"    v_mov_b32 v{32+r}, 0")
        for c in range(3):
            A(f"    v_mov_b32 v{28+c}, 0")
        A(f"K3_NOFIN{u}:")

    issue_idx(0)
    gen_item()
    issue_idx(1)
    A("    s_waitcnt vmcnt(2)")
    issue_gather(0, 67)
    A("K3_LOOP:")
    for p in range(2):
        gen_item()
        A(f"    s_cmp_ge_u32 s64, {N}")
        A("    s_cbranch_scc1 K3_END")
        issue_idx(p)
        A("    s_waitcnt vmcnt(15)")
        issue_gather(1-p, 67)
        A("    s_waitcnt vmcnt(15)")
        compute(p)
    A("    s_branch K3_LOOP")
    A("K3_END:")
    A("    s_endpgm")
    kernel_desc(name, 240)

def k4():
    name = "egnn_k4_kernel"
    kernel_begin(name)
    load_args()
    A("    s_cmp_ge_u32 s2, 157")
    A("    s_cbranch_scc1 K4_END")
    srd(24, 22, WS_WTH, 16*1024)
    srd(28, 4, 0, N*128)
    srd(32, 22, WS_MI, N*128)
    srd(36, 20, 0, N*128)
    A("    v_and_b32 v1, 63, v0")
    A("    v_lshrrev_b32 v2, 6, v0")
    A("    v_and_b32 v3, 15, v1")
    A("    v_lshrrev_b32 v4, 4, v1")
    A("    v_lshlrev_b32 v6, 4, v1")
    for t in range(16):
        if t*1024 < 4096:
            A(f"    buffer_load_dwordx4 v[{64+4*t}:{64+4*t+3}], v6, s[24:27], 0 offen offset:{t*1024}")
        else:
            A(f"    v_add_u32 v7, {t*1024}, v6")
            A(f"    buffer_load_dwordx4 v[{64+4*t}:{64+4*t+3}], v7, s[24:27], 0 offen")
    A("    v_lshlrev_b32 v6, 6, s2")
    A("    v_lshl_add_u32 v6, v2, 4, v6")
    A("    v_add_u32 v6, v6, v3")
    A("    v_lshlrev_b32 v7, 7, v6")
    A("    v_lshl_add_u32 v8, v4, 4, v7")
    A("    buffer_load_dwordx4 v[16:19], v8, s[28:31], 0 offen")
    A("    buffer_load_dwordx4 v[20:23], v8, s[28:31], 0 offen offset:64")
    A("    buffer_load_dwordx4 v[24:27], v8, s[32:35], 0 offen")
    A("    buffer_load_dwordx4 v[28:31], v8, s[32:35], 0 offen offset:64")
    A("    v_lshl_add_u32 v9, v4, 3, v7")
    for j in range(4):
        A(f"    buffer_load_dwordx2 v[{32+2*j}:{32+2*j+1}], v9, s[28:31], 0 offen offset:{32*j}")
    A("    s_waitcnt vmcnt(0)")
    for j in range(4):
        d = 48 + 4*j
        for s in range(4):
            c = "0" if s == 0 else f"v[{d}:{d+3}]"
            A(f"    v_mfma_f32_16x16x32_bf16 v[{d}:{d+3}], v[{64+16*s+4*j}:{64+16*s+4*j+3}], v[{16+4*s}:{16+4*s+3}], {c}")
    A("    s_nop 15")
    for r in range(16):
        silu(48+r, 15)
    for j in range(4):
        A(f"    v_cvt_pk_bf16_f32 v40, v{48+4*j}, v{48+4*j+1}")
        A(f"    v_cvt_pk_bf16_f32 v41, v{48+4*j+2}, v{48+4*j+3}")
        A(f"    v_lshlrev_b32 v42, 16, v40")
        A(f"    v_and_b32 v43, 0xffff0000, v40")
        A(f"    v_lshlrev_b32 v44, 16, v41")
        A(f"    v_and_b32 v45, 0xffff0000, v41")
        A(f"    v_lshlrev_b32 v46, 16, v{32+2*j}")
        A(f"    v_add_f32 v42, v42, v46")
        A(f"    v_and_b32 v46, 0xffff0000, v{32+2*j}")
        A(f"    v_add_f32 v43, v43, v46")
        A(f"    v_lshlrev_b32 v46, 16, v{32+2*j+1}")
        A(f"    v_add_f32 v44, v44, v46")
        A(f"    v_and_b32 v46, 0xffff0000, v{32+2*j+1}")
        A(f"    v_add_f32 v45, v45, v46")
        A(f"    v_cvt_pk_bf16_f32 v{10+2*j}, v42, v43")
        A(f"    v_cvt_pk_bf16_f32 v{10+2*j+1}, v44, v45")
    for j in range(4):
        A(f"    buffer_store_dwordx2 v[{10+2*j}:{10+2*j+1}], v9, s[36:39], 0 offen offset:{32*j}")
    A("K4_END:")
    A("    s_endpgm")
    kernel_desc(name, 128)

hdr = open("gather_scatter__cheap_equivariant_egnn__graph.s.ref").read().split("; @launch")[0]
A(hdr.rstrip("\n"))
A("; @launch kernel=egnn_k0_kernel grid=(157,1,1) block=(256,1,1) lds=0")
A(f"; @launch kernel=egnn_k1_kernel grid=({G1},1,1) block=(1024,1,1) lds=40960")
A(f"; @launch kernel=egnn_k2_kernel grid=({G2},1,1) block=(1024,1,1) lds=41024")
A(f"; @launch kernel=egnn_k3_kernel grid=({K3_WGS},1,1) block=(256,1,1) lds=0")
A("; @launch kernel=egnn_k4_kernel grid=(157,1,1) block=(256,1,1) lds=0")
A('.amdgcn_target "amdgcn-amd-amdhsa--gfx950"')
A(".text")
k0(); k1(); k2(); k3(); k4()
A('.section .rodata,"a"')
for d in descs:
    A(d)
open("gather_scatter__cheap_equivariant_egnn__graph.s", "w").write("\n".join(out) + "\n")
```

```python
import sys

N = 10000
E = 640000
WS_CNT  = 0
WS_RANK = 0x10000
WS_OFF  = 0x290000
WS_SORT = 0x2A0000
WS_POS4 = 0x790000
WS_MI   = 0x7C0000
WS_P1   = 0xA40000
WS_WTE  = 0xCC0000
WS_WTH  = 0xCC4000

out = []
def A(s=""):
    out.append(s)

def srd(dst, ptr, off, size):
    if off:
        A(f"    s_add_u32 s{dst}, s{ptr}, {off:#x}")
        A(f"    s_addc_u32 s{dst+1}, s{ptr+1}, 0")
    else:
        A(f"    s_mov_b32 s{dst}, s{ptr}")
        A(f"    s_mov_b32 s{dst+1}, s{ptr+1}")
    A(f"    s_mov_b32 s{dst+2}, {size}")
    A(f"    s_mov_b32 s{dst+3}, 0x00020000")

def kernel_begin(name):
    A(f".globl {name}")
    A(".p2align 8")
    A(f".type {name},@function")
    A(f"{name}:")

descs = []
def kernel_desc(name, vgpr, sgpr=96):
    acc = (vgpr + 3) // 4 * 4
    descs.append(f""".p2align 6
.amdhsa_kernel {name}
  .amdhsa_next_free_vgpr {vgpr}
  .amdhsa_next_free_sgpr {sgpr}
  .amdhsa_accum_offset {acc}
  .amdhsa_group_segment_fixed_size 0
  .amdhsa_kernarg_size 88
  .amdhsa_user_sgpr_count 2
  .amdhsa_user_sgpr_kernarg_segment_ptr 1
  .amdhsa_system_sgpr_workgroup_id_x 1
.end_amdhsa_kernel""")

def load_args():
    A("    s_load_dwordx16 s[4:19], s[0:1], 0")
    A("    s_load_dwordx2 s[20:21], s[0:1], 64")
    A("    s_load_dwordx2 s[22:23], s[0:1], 80")
    A("    s_waitcnt lgkmcnt(0)")

LOG2E_NEG = "0xbfb8aa3b"

def silu(x, t):
    A(f"    v_mul_f32 v{t}, {LOG2E_NEG}, v{x}")
    A(f"    v_exp_f32 v{t}, v{t}")
    A(f"    s_nop 0")
    A(f"    v_add_f32 v{t}, 1.0, v{t}")
    A(f"    v_rcp_f32 v{t}, v{t}")
    A(f"    s_nop 0")
    A(f"    v_mul_f32 v{x}, v{x}, v{t}")

def k0():
    name = "egnn_k0_kernel"
    kernel_begin(name)
    load_args()
    A("    s_cmp_ge_u32 s2, 157")
    A("    s_cbranch_scc1 K0_END")
    srd(24, 6, 0, N*6)
    srd(28, 22, WS_CNT, N*4)
    srd(32, 22, WS_POS4, N*16)
    srd(36, 4, 0, N*128)
    srd(40, 14, 0, 145*128)
    srd(44, 22, WS_P1, N*256)
    srd(48, 18, 0, 128*128)
    srd(52, 22, WS_WTE, 12*1024)
    srd(56, 22, WS_WTH, 16*1024)
    A("    v_lshlrev_b32 v1, 6, s2")
    A("    v_add_u32 v1, v1, v0")
    A("    v_cmp_gt_u32 vcc, 64, v0")
    A("    s_and_saveexec_b64 s[60:61], vcc")
    A("    s_cbranch_execz K0_A_DONE")
    A("    v_mul_u32_u24 v2, 6, v1")
    A("    buffer_load_ushort v4, v2, s[24:27], 0 offen")
    A("    buffer_load_ushort v5, v2, s[24:27], 0 offen offset:2")
    A("    buffer_load_ushort v6, v2, s[24:27], 0 offen offset:4")
    A("    v_mov_b32 v7, 0")
    A("    v_lshlrev_b32 v3, 2, v1")
    A("    buffer_store_dword v7, v3, s[28:31], 0 offen")
    A("    v_lshlrev_b32 v3, 4, v1")
    A("    s_waitcnt vmcnt(1)")
    A("    v_lshlrev_b32 v4, 16, v4")
    A("    v_lshlrev_b32 v5, 16, v5")
    A("    v_lshlrev_b32 v6, 16, v6")
    A("    buffer_store_dwordx4 v[4:7], v3, s[32:35], 0 offen")
    A("K0_A_DONE:")
    A("    s_mov_b64 exec, -1")
    A("    v_and_b32 v1, 63, v0")
    A("    v_lshrrev_b32 v2, 6, v0")
    A("    v_and_b32 v3, 15, v1")
    A("    v_lshrrev_b32 v4, 4, v1")
    A("    v_lshlrev_b32 v5, 10, v4")
    A("    v_lshl_add_u32 v5, v3, 1, v5")
    A("    v_add_u32 v72, 4096, v5")
    for s in range(2):
        for j in range(4):
            for q in range(8):
                off = q*128 + j*32
                A(f"    buffer_load_ushort v{48+q}, v5, s[40:43], {4096*s} offen offset:{off}" if s == 0 else f"    buffer_load_ushort v{48+q}, v72, s[40:43], 0 offen offset:{off}")
            A("    s_waitcnt vmcnt(0)")
            b = 16 + (s*4+j)*4
            for r in range(4):
                A(f"    v_lshl_or_b32 v{b+r}, v{48+2*r+1}, 16, v{48+2*r}")
    A("    v_lshlrev_b32 v6, 6, s2")
    A("    v_lshl_add_u32 v6, v2, 4, v6")
    A("    v_add_u32 v6, v6, v3")
    A("    v_lshlrev_b32 v7, 7, v6")
    A("    v_lshl_add_u32 v7, v4, 4, v7")
    A("    buffer_load_dwordx4 v[8:11], v7, s[36:39], 0 offen")
    A("    buffer_load_dwordx4 v[12:15], v7, s[36:39], 0 offen offset:64")
    A("    s_waitcnt vmcnt(0)")
    for j in range(4):
        d = 56 + 4*j
        A(f"    v_mfma_f32_16x16x32_bf16 v[{d}:{d+3}], v[{16+j*4}:{16+j*4+3}], v[8:11], 0")
        A(f"    v_mfma_f32_16x16x32_bf16 v[{d}:{d+3}], v[{32+j*4}:{32+j*4+3}], v[12:15], v[{d}:{d+3}]")
    A("    s_nop 15")
    A("    v_lshlrev_b32 v7, 8, v6")
    A("    v_lshl_add_u32 v7, v4, 4, v7")
    for j in range(4):
        d = 56 + 4*j
        A(f"    buffer_store_dwordx4 v[{d}:{d+3}], v7, s[44:47], 0 offen offset:{j*64}")
    A("    s_cmp_ge_u32 s2, 7")
    A("    s_cbranch_scc1 K0_END")
    A("    v_lshlrev_b32 v1, 8, s2")
    A("    v_add_u32 v1, v1, v0")
    A("    v_and_b32 v2, 63, v1")
    A("    v_lshrrev_b32 v3, 6, v1")
    A("    v_and_b32 v4, 15, v2")
    A("    v_lshrrev_b32 v5, 4, v2")
    A("    v_and_b32 v6, 3, v3")
    A("    v_lshrrev_b32 v7, 2, v3")
    A("    v_lshl_add_u32 v8, v6, 4, v4")
    A("    v_lshlrev_b32 v8, 1, v8")
    A("    v_lshlrev_b32 v9, 5, v7")
    A("    v_lshl_add_u32 v9, v5, 3, v9")
    A("    v_add_u32 v10, 64, v9")
    A("    v_lshl_add_u32 v11, v5, 3, 0")
    A("    v_add_u32 v11, 129, v11")
    A("    v_cmp_eq_u32 vcc, 2, v7")
    A("    s_nop 1")
    A("    v_cndmask_b32 v10, v10, v11, vcc")
    A("    v_subrev_u32 v12, 96, v9")
    A("    v_cmp_gt_u32 vcc, 12, v3")
    A("    s_nop 1")
    A("    v_cndmask_b32 v10, v12, v10, vcc")
    A("    v_lshl_add_u32 v13, v10, 7, v8")
    for q in range(8):
        A(f"    v_mov_b32 v{16+q}, 0")
    A("    s_and_saveexec_b64 s[60:61], vcc")
    A("    s_cbranch_execz K0_C1")
    A("    v_cmp_ne_u32 vcc, 2, v7")
    A("    v_cmp_gt_u32 s[62:63], 2, v5")
    A("    s_or_b64 vcc, vcc, s[62:63]")
    A("    s_and_b64 exec, exec, vcc")
    A("    s_cbranch_execz K0_C1")
    for q in range(8):
        A(f"    buffer_load_ushort v{16+q}, v13, s[40:43], 0 offen offset:{q*128}")
    A("K0_C1:")
    A("    s_mov_b64 exec, -1")
    A("    v_cmp_eq_u32 vcc, 2, v7")
    A("    v_cmp_eq_u32 s[62:63], 2, v5")
    A("    s_and_b64 vcc, vcc, s[62:63]")
    A("    s_and_saveexec_b64 s[60:61], vcc")
    A("    s_cbranch_execz K0_C2")
    A(f"    buffer_load_ushort v16, v8, s[40:43], 0 offen offset:{0}")
    out.pop()
    A("    v_add_u32 v14, 16384, v8")
    A("    buffer_load_ushort v16, v14, s[40:43], 0 offen")
    A("K0_C2:")
    A("    s_mov_b64 exec, -1")
    A("    v_cmp_le_u32 vcc, 12, v3")
    A("    s_and_saveexec_b64 s[60:61], vcc")
    A("    s_cbranch_execz K0_C3")
    for q in range(8):
        A(f"    buffer_load_ushort v{16+q}, v13, s[48:51], 0 offen offset:{q*128}")
    A("K0_C3:")
    A("    s_mov_b64 exec, -1")
    A("    s_waitcnt vmcnt(0)")
    for r in range(4):
        A(f"    v_lshl_or_b32 v{24+r}, v{16+2*r+1}, 16, v{16+2*r}")
    A("    v_lshlrev_b32 v14, 4, v1")
    A("    buffer_store_dwordx4 v[24:27], v14, s[52:55], 0 offen")
    A("    v_subrev_u32 v15, 12288, v14")
    A("    buffer_store_dwordx4 v[24:27], v15, s[56:59], 0 offen")
    A("K0_END:")
    A("    s_endpgm")
    kernel_desc(name, 76)

G1 = 64
CH1 = E // G1
def k1():
    name = "egnn_k1_kernel"
    kernel_begin(name)
    load_args()
    A(f"    s_cmp_ge_u32 s2, {G1}")
    A("    s_cbranch_scc1 K1_END")
    srd(24, 12, 0, E*4)
    srd(28, 22, WS_CNT, N*4)
    srd(32, 22, WS_RANK, E*4)
    A("    v_mov_b32 v1, 0")
    A("    v_lshlrev_b32 v2, 2, v0")
    for i in range(10):
        A(f"    ds_write_b32 v2, v1 offset:{i*4096}")
    A(f"    s_mul_i32 s36, s2, {CH1*4}")
    A("    v_cmp_gt_u32 vcc, 784, v0")
    A("    s_mov_b64 s[40:41], vcc")
    for i in range(9):
        A(f"    buffer_load_dword v{10+i}, v2, s[24:27], s36 offen offset:{i*4096 if i*4096 < 4096 else 0}" if i == 0 else "")
    out[:] = [x for x in out if x != ""]
    for i in range(1, 10):
        A(f"    v_add_u32 v{30+i}, {i*4096}, v2")
    for i in range(1, 10):
        A(f"    buffer_load_dword v{10+i}, v{30+i}, s[24:27], s36 offen")
    A("    s_waitcnt lgkmcnt(0)")
    A("    s_barrier")
    A("    v_mov_b32 v3, 1")
    A("    s_waitcnt vmcnt(0)")
    for i in range(10):
        if i == 9:
            A("    s_mov_b64 exec, s[40:41]")
        A(f"    v_lshlrev_b32 v{10+i}, 2, v{10+i}")
        A(f"    ds_add_rtn_u32 v{20+i}, v{10+i}, v3")
    A("    s_mov_b64 exec, -1")
    A("    s_waitcnt lgkmcnt(0)")
    A("    s_barrier")
    for j in range(10):
        if j == 9:
            A("    s_mov_b64 exec, s[40:41]")
        A(f"    ds_read_b32 v{41+j}, v2 offset:{j*4096}")
    A("    s_mov_b64 exec, -1")
    A("    s_waitcnt lgkmcnt(0)")
    for j in range(10):
        if j == 9:
            A("    s_mov_b64 exec, s[40:41]")
        va = 2 if j == 0 else 30+j
        A(f"    buffer_atomic_add v{41+j}, v{va}, s[28:31], 0 offen sc0 sc1")
    A("    s_mov_b64 exec, -1")
    A("    s_waitcnt vmcnt(0)")
    for j in range(10):
        if j == 9:
            A("    s_mov_b64 exec, s[40:41]")
        A(f"    ds_write_b32 v2, v{41+j} offset:{j*4096}")
    A("    s_mov_b64 exec, -1")
    A("    s_waitcnt lgkmcnt(0)")
    A("    s_barrier")
    for i in range(10):
        if i == 9:
            A("    s_mov_b64 exec, s[40:41]")
        A(f"    ds_read_b32 v{41+i}, v{10+i}")
    A("    s_mov_b64 exec, -1")
    A("    s_waitcnt lgkmcnt(0)")
    for i in range(10):
        if i == 9:
            A("    s_mov_b64 exec, s[40:41]")
        va = 2 if i == 0 else 30+i
        A(f"    v_add_u32 v{41+i}, v{41+i}, v{20+i}")
        A(f"    buffer_store_dword v{41+i}, v{va}, s[32:35], s36 offen")
    A("K1_END:")
    A("    s_endpgm")
    kernel_desc(name, 52)

G2 = 64
CH2 = E // G2
def k2():
    name = "egnn_k2_kernel"
    kernel_begin(name)
    load_args()
    A(f"    s_cmp_ge_u32 s2, {G2}")
    A("    s_cbranch_scc1 K2_END")
    srd(24, 22, WS_CNT, N*4)
    srd(28, 22, WS_OFF, (N+1)*4)
    srd(32, 12, 0, E*4)
    srd(36, 22, WS_RANK, E*4)
    srd(40, 10, 0, E*4)
    srd(44, 22, WS_SORT, E*8)
    A("    v_mul_u32_u24 v1, 40, v0")
    A("    buffer_load_dwordx4 v[4:7], v1, s[24:27], 0 offen")
    A("    buffer_load_dwordx4 v[8:11], v1, s[24:27], 0 offen offset:16")
    A("    buffer_load_dwordx2 v[12:13], v1, s[24:27], 0 offen offset:32")
    A("    s_waitcnt vmcnt(0)")
    A("    v_mov_b32 v14, 0")
    for k in range(1, 10):
        A(f"    v_add_u32 v{14+k}, v{14+k-1}, v{4+k-1}")
    A("    v_add_u32 v24, v23, v13")
    A("    v_mov_b32 v25, v24")
    A("    s_nop 1")
    for sh in (1, 2, 4, 8):
        A(f"    v_add_u32_dpp v25, v25, v25 row_shr:{sh} row_mask:0xf bank_mask:0xf")
        A("    s_nop 1")
    A("    v_add_u32_dpp v25, v25, v25 row_bcast:15 row_mask:0xa bank_mask:0xf")
    A("    s_nop 1")
    A("    v_add_u32_dpp v25, v25, v25 row_bcast:31 row_mask:0xc bank_mask:0xf")
    A("    s_nop 1")
    A("    v_lshrrev_b32 v26, 6, v0")
    A("    v_and_b32 v27, 63, v0")
    A("    v_cmp_eq_u32 vcc, 63, v27")
    A("    v_lshlrev_b32 v28, 2, v26")
    A("    s_and_saveexec_b64 s[48:49], vcc")
    A("    ds_write_b32 v28, v25 offset:40960")
    A("    s_mov_b64 exec, -1")
    A("    s_waitcnt lgkmcnt(0)")
    A("    s_barrier")
    A("    v_mov_b32 v29, 0")
    A("    ds_read_b128 v[32:35], v29 offset:40960")
    A("    ds_read_b128 v[36:39], v29 offset:40976")
    A("    ds_read_b128 v[40:43], v29 offset:40992")
    A("    ds_read_b128 v[44:47], v29 offset:41008")
    A("    s_waitcnt lgkmcnt(0)")
    A("    v_sub_u32 v30, v25, v24")
    for w in range(15):
        A(f"    v_cmp_lt_u32 vcc, {w}, v26")
        A("    s_nop 1")
        A(f"    v_cndmask_b32 v31, 0, v{32+w}, vcc")
        A("    v_add_u32 v30, v30, v31")
    A("    v_cmp_gt_u32 vcc, 1000, v0")
    A("    s_and_saveexec_b64 s[48:49], vcc")
    for k in range(10):
        A(f"    v_add_u32 v{14+k}, v{14+k}, v30")
        A(f"    ds_write_b32 v1, v{14+k} offset:{4*k}")
    A("    s_cmp_lg_u32 s2, 0")
    A("    s_cbranch_scc1 K2_NOOFF")
    A("    buffer_store_dwordx4 v[14:17], v1, s[28:31], 0 offen")
    A("    buffer_store_dwordx4 v[18:21], v1, s[28:31], 0 offen offset:16")
    A("    buffer_store_dwordx2 v[22:23], v1, s[28:31], 0 offen offset:32")
    A("    v_cmp_eq_u32 vcc, 999, v0")
    A("    s_and_b64 exec, exec, vcc")
    A("    v_add_u32 v31, v30, v24")
    A("    buffer_store_dword v31, v1, s[28:31], 0 offen offset:40")
    A("K2_NOOFF:")
    A("    s_mov_b64 exec, -1")
    A("    s_waitcnt lgkmcnt(0)")
    A("    s_barrier")
    A(f"    s_mul_i32 s50, s2, {CH2}")
    A("    v_cmp_gt_u32 vcc, 784, v0")
    A("    s_mov_b64 s[52:53], vcc")
    A("    v_add_u32 v2, s50, v0")
    for i in range(10):
        A(f"    v_add_u32 v{10+i}, {i*1024}, v2")
        A(f"    v_lshlrev_b32 v{20+i}, 2, v{10+i}")
    for i in range(10):
        A(f"    buffer_load_dword v{30+i}, v{20+i}, s[32:35], 0 offen")
        A(f"    buffer_load_dword v{40+i}, v{20+i}, s[36:39], 0 offen")
        A(f"    buffer_load_dword v{50+i}, v{20+i}, s[40:43], 0 offen")
    A("    s_waitcnt vmcnt(0)")
    for i in range(10):
        A(f"    v_lshlrev_b32 v{30+i}, 2, v{30+i}")
        A(f"    ds_read_b32 v{30+i}, v{30+i}")
    A("    s_waitcnt lgkmcnt(0)")
    for i in range(10):
        if i == 9:
            A("    s_mov_b64 exec, s[52:53]")
        A(f"    v_add_u32 v{30+i}, v{30+i}, v{40+i}")
        A(f"    v_lshlrev_b32 v{30+i}, 3, v{30+i}")
        A(f"    v_mov_b32 v60, v{50+i}")
        A(f"    v_mov_b32 v61, v{10+i}")
        A(f"    buffer_store_dwordx2 v[60:61], v{30+i}, s[44:47], 0 offen")
        A("    s_nop 1")
    A("K2_END:")
    A("    s_endpgm")
    kernel_desc(name, 64)

K3_WGS = 512
NW3 = K3_WGS * 4
def k3():
    name = "egnn_k3_kernel"
    kernel_begin(name)
    load_args()
    A(f"    s_cmp_ge_u32 s2, {K3_WGS}")
    A("    s_cbranch_scc1 K3_END")
    srd(24, 22, WS_WTE, 12*1024)
    srd(28, 16, 0, 128)
    srd(32, 22, WS_SORT, E*8)
    srd(36, 4, 0, N*128)
    srd(40, 8, 0, E*32)
    srd(44, 22, WS_POS4, N*16)
    srd(48, 22, WS_P1, N*256)
    srd(52, 22, WS_MI, N*128)
    srd(56, 20, N*128, N*6)
    A(f"    s_add_u32 s60, s22, {WS_OFF:#x}")
    A("    s_addc_u32 s61, s23, 0")
    A("    v_and_b32 v1, 63, v0")
    A("    v_lshrrev_b32 v2, 6, v0")
    A("    v_and_b32 v3, 15, v1")
    A("    v_lshrrev_b32 v4, 4, v1")
    A("    v_lshlrev_b32 v5, 4, v4")
    A("    v_lshlrev_b32 v6, 3, v4")
    A("    v_mov_b32 v7, 0")
    A("    v_cmp_gt_u32 s[74:75], 2, v4")
    A("    v_cmp_eq_u32 s[76:77], 2, v4")
    A("    v_cmp_eq_u32 s[78:79], 0, v3")
    A("    v_cmp_eq_u32 s[80:81], 63, v1")
    A(f"    s_mov_b32 s88, {LOG2E_NEG}")
    A(f"    s_mov_b32 s89, {LOG2E_NEG}")
    A("    v_readfirstlane_b32 s62, v2")
    A("    s_lshl_b32 s63, s2, 2")
    A("    s_add_u32 s62, s62, s63")
    A("    s_lshl_b32 s63, s62, 2")
    A("    s_load_dwordx2 s[84:85], s[60:61], s63")
    A(f"    s_add_u32 s63, s63, {NW3*4}")
    A("    s_load_dwordx2 s[82:83], s[60:61], s63")
    A("    v_lshlrev_b32 v8, 4, v1")
    for t in range(12):
        if t*1024 < 4096:
            A(f"    buffer_load_dwordx4 v[{64+4*t}:{64+4*t+3}], v8, s[24:27], 0 offen offset:{t*1024}")
        else:
            A(f"    v_add_u32 v9, {t*1024}, v8")
            A(f"    buffer_load_dwordx4 v[{64+4*t}:{64+4*t+3}], v9, s[24:27], 0 offen")
    for j in range(4):
        A(f"    buffer_load_dwordx2 v[{48+2*j}:{48+2*j+1}], v6, s[28:31], 0 offen offset:{j*32}")
    A("    s_waitcnt vmcnt(0)")
    for j in range(4):
        A(f"    v_lshlrev_b32 v{112+4*j}, 16, v{48+2*j}")
        A(f"    v_and_b32 v{112+4*j+1}, 0xffff0000, v{48+2*j}")
        A(f"    v_lshlrev_b32 v{112+4*j+2}, 16, v{48+2*j+1}")
        A(f"    v_and_b32 v{112+4*j+3}, 0xffff0000, v{48+2*j+1}")
    for r in range(16):
        A(f"    v_mov_b32 v{32+r}, 0")
    for c in range(3):
        A(f"    v_mov_b32 v{28+c}, 0")
    A("    s_waitcnt lgkmcnt(0)")
    A("    s_mov_b32 s70, s62")
    A("    s_mov_b32 s71, s84")
    A("    s_mov_b32 s72, s85")

    BUF = lambda p: 128 + 56*p
    H0 = lambda p, tt: BUF(p) + 16*tt
    H1 = lambda p, tt: BUF(p) + 16*tt + 4
    AT = lambda p, tt: BUF(p) + 16*tt + 8
    PS = lambda p, tt: BUF(p) + 16*tt + 12
    P1C = lambda p: BUF(p) + 32
    PN = lambda p: BUF(p) + 48
    IDX = lambda p: BUF(p) + 52
    uid = [0]

    def gen_item():
        uid[0] += 1
        u = uid[0]
        A("    s_mov_b32 s64, s67\n    s_mov_b32 s65, s68\n    s_mov_b32 s66, s69")
        A("    s_mov_b32 s67, s70\n    s_mov_b32 s68, s71\n    s_mov_b32 s69, s72")
        A("    s_add_u32 s71, s71, 32")
        A("    s_cmp_lt_u32 s71, s72")
        A(f"    s_cbranch_scc1 K3_GI{u}")
        A(f"    s_add_u32 s70, s70, {NW3}")
        A("    s_waitcnt lgkmcnt(0)")
        A("    s_mov_b32 s71, s82")
        A("    s_mov_b32 s72, s83")
        A(f"    s_cmp_lt_u32 s70, {N}")
        A(f"    s_cbranch_scc1 K3_GV{u}")
        A(f"    s_mov_b32 s70, {N}")
        A("    s_mov_b32 s71, 0")
        A("    s_mov_b32 s72, 0")
        A(f"K3_GV{u}:")
        A(f"    s_add_u32 s63, s70, {NW3}")
        A(f"    s_min_u32 s63, s63, {N-1}")
        A("    s_lshl_b32 s63, s63, 2")
        A("    s_load_dwordx2 s[82:83], s[60:61], s63")
        A(f"K3_GI{u}:")

    def issue_idx(p):
        A("    v_add_u32 v8, s71, v3")
        A("    v_lshlrev_b32 v8, 3, v8")
        A(f"    buffer_load_dwordx2 v[{IDX(p)}:{IDX(p)+1}], v8, s[32:35], 0 offen")
        A(f"    buffer_load_dwordx2 v[{IDX(p)+2}:{IDX(p)+3}], v8, s[32:35], 0 offen offset:128")

    def issue_gather(p, nreg):
        for tt in range(2):
            sv, ev = IDX(p)+2*tt, IDX(p)+2*tt+1
            A(f"    v_lshl_add_u32 v8, v{sv}, 7, v5")
            A(f"    buffer_load_dwordx4 v[{H0(p,tt)}:{H0(p,tt)+3}], v8, s[36:39], 0 offen")
            A(f"    buffer_load_dwordx4 v[{H1(p,tt)}:{H1(p,tt)+3}], v8, s[36:39], 0 offen offset:64")
            A(f"    v_lshl_add_u32 v9, v{ev}, 5, v5")
            A(f"    v_cndmask_b32 v9, -1, v9, s[74:75]")
            A(f"    buffer_load_dwordx4 v[{AT(p,tt)}:{AT(p,tt)+3}], v9, s[40:43], 0 offen")
            A(f"    v_lshlrev_b32 v10, 4, v{sv}")
            A(f"    buffer_load_dwordx4 v[{PS(p,tt)}:{PS(p,tt)+3}], v10, s[44:47], 0 offen")
        A(f"    s_lshl_b32 s73, s{nreg}, 8")
        for j in range(4):
            A(f"    buffer_load_dwordx4 v[{P1C(p)+4*j}:{P1C(p)+4*j+3}], v5, s[48:51], s73 offen offset:{64*j}")
        A(f"    s_lshl_b32 s73, s{nreg}, 4")
        A(f"    buffer_load_dwordx4 v[{PN(p)}:{PN(p)+3}], v7, s[44:47], s73 offen")

    def compute(p):
        uid[0] += 1
        u = uid[0]
        for tt in range(2):
            if tt == 1:
                A("    s_add_u32 s73, s65, 16")
                A("    s_cmp_ge_u32 s73, s66")
                A(f"    s_cbranch_scc1 K3_SKIP{u}")
            ps = PS(p, tt); pn = PN(p); at = AT(p, tt)
            A(f"    v_add_u32 v8, s65, v3")
            if tt: A("    v_add_u32 v8, 16, v8")
            A("    v_cmp_gt_u32 s[86:87], s66, v8")
            for c in range(3):
                A(f"    v_sub_f32 v{16+c}, v{pn+c}, v{ps+c}")
            A("    v_cvt_pk_bf16_f32 v15, v16, v17")
            A("    v_cvt_pk_bf16_f32 v19, v18, v18")
            A("    v_lshlrev_b32 v16, 16, v15")
            A("    v_and_b32 v17, 0xffff0000, v15")
            A("    v_lshlrev_b32 v18, 16, v19")
            A("    v_mul_f32 v20, v16, v16")
            A("    v_fmac_f32 v20, v17, v17")
            A("    v_fmac_f32 v20, v18, v18")
            A("    v_cvt_pk_bf16_f32 v15, v20, v20")
            A("    v_and_b32 v15, 0xffff, v15")
            A(f"    v_cndmask_b32 v{at}, v{at}, v15, s[76:77]")
            for j in range(4):
                d = 48 + 4*j
                A(f"    v_mfma_f32_16x16x32_bf16 v[{d}:{d+3}], v[{64+4*j}:{64+4*j+3}], v[{H0(p,tt)}:{H0(p,tt)+3}], v[{P1C(p)+4*j}:{P1C(p)+4*j+3}]")
            for j in range(4):
                d = 48 + 4*j
                A(f"    v_mfma_f32_16x16x32_bf16 v[{d}:{d+3}], v[{80+4*j}:{80+4*j+3}], v[{H1(p,tt)}:{H1(p,tt)+3}], v[{d}:{d+3}]")
            for j in range(4):
                d = 48 + 4*j
                A(f"    v_mfma_f32_16x16x32_bf16 v[{d}:{d+3}], v[{96+4*j}:{96+4*j+3}], v[{at}:{at+3}], v[{d}:{d+3}]")
            A("    s_nop 4")
            for half in range(2):
                x = 48 + 8*half
                for r in range(0, 8, 2):
                    A(f"    v_pk_mul_f32 v[{20+r}:{21+r}], v[{x+r}:{x+r+1}], s[88:89]")
                for r in range(8):
                    A(f"    v_exp_f32 v{20+r}, v{20+r}")
                for r in range(0, 8, 2):
                    A(f"    v_pk_add_f32 v[{20+r}:{21+r}], v[{20+r}:{21+r}], 1.0 op_sel_hi:[1,0]")
                for r in range(8):
                    A(f"    v_rcp_f32 v{20+r}, v{20+r}")
                for r in range(0, 8, 2):
                    A(f"    v_pk_mul_f32 v[{x+r}:{x+r+1}], v[{x+r}:{x+r+1}], v[{20+r}:{21+r}]")
            A("    s_mov_b64 exec, s[86:87]")
            for r in range(0, 16, 2):
                A(f"    v_pk_add_f32 v[{32+r}:{33+r}], v[{32+r}:{33+r}], v[{48+r}:{49+r}]")
                if r == 0:
                    A(f"    v_pk_mul_f32 v[20:21], v[112:113], v[48:49]")
                else:
                    A(f"    v_pk_fma_f32 v[20:21], v[{112+r}:{113+r}], v[{48+r}:{49+r}], v[20:21]")
            A("    v_add_f32 v15, v20, v21")
            for c in range(3):
                A(f"    v_fmac_f32 v{28+c}, v{16+c}, v15")
            A("    s_mov_b64 exec, -1")
        A(f"K3_SKIP{u}:")
        A("    s_add_u32 s73, s65, 32")
        A("    s_cmp_lt_u32 s73, s66")
        A(f"    s_cbranch_scc1 K3_NOFIN{u}")
        for sh in (8, 4, 2, 1):
            for r in range(16):
                A(f"    v_add_f32_dpp v{32+r}, v{32+r}, v{32+r} row_ror:{sh} row_mask:0xf bank_mask:0xf")
            for c in range(3):
                A(f"    v_add_f32_dpp v{28+c}, v{28+c}, v{28+c} row_ror:{sh} row_mask:0xf bank_mask:0xf")
        A("    s_nop 1")
        for c in range(3):
            A(f"    v_add_f32_dpp v{28+c}, v{28+c}, v{28+c} row_bcast:15 row_mask:0xa bank_mask:0xf")
        A("    s_nop 1")
        for c in range(3):
            A(f"    v_add_f32_dpp v{28+c}, v{28+c}, v{28+c} row_bcast:31 row_mask:0xc bank_mask:0xf")
        for j in range(4):
            A(f"    v_cvt_pk_bf16_f32 v{48+2*j}, v{32+4*j}, v{32+4*j+1}")
            A(f"    v_cvt_pk_bf16_f32 v{48+2*j+1}, v{32+4*j+2}, v{32+4*j+3}")
        for c in range(3):
            A(f"    v_add_f32 v{28+c}, v{28+c}, v{PN(p)+c}")
        A("    v_cvt_pk_bf16_f32 v56, v28, v29")
        A("    v_cvt_pk_bf16_f32 v57, v30, v30")
        A("    v_lshrrev_b32 v58, 16, v56")
        A("    s_lshl_b32 s73, s64, 7")
        A("    s_mov_b64 exec, s[78:79]")
        for j in range(4):
            A(f"    buffer_store_dwordx2 v[{48+2*j}:{48+2*j+1}], v6, s[52:55], s73 offen offset:{32*j}")
        A("    s_mul_i32 s73, s64, 6")
        A("    s_mov_b64 exec, s[80:81]")
        A("    buffer_store_short v56, v7, s[56:59], s73 offen")
        A("    buffer_store_short v58, v7, s[56:59], s73 offen offset:2")
        A("    buffer_store_short v57, v7, s[56:59], s73 offen offset:4")
        A("    s_mov_b64 exec, -1")
        for r in range(16):
            A(f"    v_mov_b32 v{32+r}, 0")
        for c in range(3):
            A(f"    v_mov_b32 v{28+c}, 0")
        A(f"K3_NOFIN{u}:")

    issue_idx(0)
    gen_item()
    issue_idx(1)
    A("    s_waitcnt vmcnt(2)")
    issue_gather(0, 67)
    A("K3_LOOP:")
    for p in range(2):
        gen_item()
        A(f"    s_cmp_ge_u32 s64, {N}")
        A("    s_cbranch_scc1 K3_END")
        issue_idx(p)
        A("    s_waitcnt vmcnt(15)")
        issue_gather(1-p, 67)
        A("    s_waitcnt vmcnt(15)")
        compute(p)
    A("    s_branch K3_LOOP")
    A("K3_END:")
    A("    s_endpgm")
    kernel_desc(name, 240)

def k4():
    name = "egnn_k4_kernel"
    kernel_begin(name)
    load_args()
    A("    s_cmp_ge_u32 s2, 157")
    A("    s_cbranch_scc1 K4_END")
    srd(24, 22, WS_WTH, 16*1024)
    srd(28, 4, 0, N*128)
    srd(32, 22, WS_MI, N*128)
    srd(36, 20, 0, N*128)
    A("    v_and_b32 v1, 63, v0")
    A("    v_lshrrev_b32 v2, 6, v0")
    A("    v_and_b32 v3, 15, v1")
    A("    v_lshrrev_b32 v4, 4, v1")
    A("    v_lshlrev_b32 v6, 4, v1")
    for t in range(16):
        if t*1024 < 4096:
            A(f"    buffer_load_dwordx4 v[{64+4*t}:{64+4*t+3}], v6, s[24:27], 0 offen offset:{t*1024}")
        else:
            A(f"    v_add_u32 v7, {t*1024}, v6")
            A(f"    buffer_load_dwordx4 v[{64+4*t}:{64+4*t+3}], v7, s[24:27], 0 offen")
    A("    v_lshlrev_b32 v6, 6, s2")
    A("    v_lshl_add_u32 v6, v2, 4, v6")
    A("    v_add_u32 v6, v6, v3")
    A("    v_lshlrev_b32 v7, 7, v6")
    A("    v_lshl_add_u32 v8, v4, 4, v7")
    A("    buffer_load_dwordx4 v[16:19], v8, s[28:31], 0 offen")
    A("    buffer_load_dwordx4 v[20:23], v8, s[28:31], 0 offen offset:64")
    A("    buffer_load_dwordx4 v[24:27], v8, s[32:35], 0 offen")
    A("    buffer_load_dwordx4 v[28:31], v8, s[32:35], 0 offen offset:64")
    A("    v_lshl_add_u32 v9, v4, 3, v7")
    for j in range(4):
        A(f"    buffer_load_dwordx2 v[{32+2*j}:{32+2*j+1}], v9, s[28:31], 0 offen offset:{32*j}")
    A("    s_waitcnt vmcnt(0)")
    for j in range(4):
        d = 48 + 4*j
        for s in range(4):
            c = "0" if s == 0 else f"v[{d}:{d+3}]"
            A(f"    v_mfma_f32_16x16x32_bf16 v[{d}:{d+3}], v[{64+16*s+4*j}:{64+16*s+4*j+3}], v[{16+4*s}:{16+4*s+3}], {c}")
    A("    s_nop 15")
    for r in range(16):
        silu(48+r, 15)
    for j in range(4):
        A(f"    v_cvt_pk_bf16_f32 v40, v{48+4*j}, v{48+4*j+1}")
        A(f"    v_cvt_pk_bf16_f32 v41, v{48+4*j+2}, v{48+4*j+3}")
        A(f"    v_lshlrev_b32 v42, 16, v40")
        A(f"    v_and_b32 v43, 0xffff0000, v40")
        A(f"    v_lshlrev_b32 v44, 16, v41")
        A(f"    v_and_b32 v45, 0xffff0000, v41")
        A(f"    v_lshlrev_b32 v46, 16, v{32+2*j}")
        A(f"    v_add_f32 v42, v42, v46")
        A(f"    v_and_b32 v46, 0xffff0000, v{32+2*j}")
        A(f"    v_add_f32 v43, v43, v46")
        A(f"    v_lshlrev_b32 v46, 16, v{32+2*j+1}")
        A(f"    v_add_f32 v44, v44, v46")
        A(f"    v_and_b32 v46, 0xffff0000, v{32+2*j+1}")
        A(f"    v_add_f32 v45, v45, v46")
        A(f"    v_cvt_pk_bf16_f32 v{10+2*j}, v42, v43")
        A(f"    v_cvt_pk_bf16_f32 v{10+2*j+1}, v44, v45")
    for j in range(4):
        A(f"    buffer_store_dwordx2 v[{10+2*j}:{10+2*j+1}], v9, s[36:39], 0 offen offset:{32*j}")
    A("K4_END:")
    A("    s_endpgm")
    kernel_desc(name, 128)

hdr = open("gather_scatter__cheap_equivariant_egnn__graph.s.ref").read().split("; @launch")[0]
A(hdr.rstrip("\n"))
A("; @launch kernel=egnn_k0_kernel grid=(157,1,1) block=(256,1,1) lds=0")
A(f"; @launch kernel=egnn_k1_kernel grid=({G1},1,1) block=(1024,1,1) lds=40960")
A(f"; @launch kernel=egnn_k2_kernel grid=({G2},1,1) block=(1024,1,1) lds=41024")
A(f"; @launch kernel=egnn_k3_kernel grid=({K3_WGS},1,1) block=(256,1,1) lds=0")
A("; @launch kernel=egnn_k4_kernel grid=(157,1,1) block=(256,1,1) lds=0")
A('.amdgcn_target "amdgcn-amd-amdhsa--gfx950"')
A(".text")
k0(); k1(); k2(); k3(); k4()
A('.section .rodata,"a"')
for d in descs:
    A(d)
open("gather_scatter__cheap_equivariant_egnn__graph.s", "w").write("\n".join(out) + "\n")
```

```python
import sys

N = 10000
E = 640000
WS_CNT  = 0
WS_RANK = 0x10000
WS_OFF  = 0x290000
WS_SORT = 0x2A0000
WS_POS4 = 0x790000
WS_MI   = 0x7C0000
WS_P1   = 0xA40000
WS_WTE  = 0xCC0000
WS_WTH  = 0xCC4000

out = []
def A(s=""):
    out.append(s)

def srd(dst, ptr, off, size):
    if off:
        A(f"    s_add_u32 s{dst}, s{ptr}, {off:#x}")
        A(f"    s_addc_u32 s{dst+1}, s{ptr+1}, 0")
    else:
        A(f"    s_mov_b32 s{dst}, s{ptr}")
        A(f"    s_mov_b32 s{dst+1}, s{ptr+1}")
    A(f"    s_mov_b32 s{dst+2}, {size}")
    A(f"    s_mov_b32 s{dst+3}, 0x00020000")

def kernel_begin(name):
    A(f".globl {name}")
    A(".p2align 8")
    A(f".type {name},@function")
    A(f"{name}:")

descs = []
def kernel_desc(name, vgpr, sgpr=96):
    acc = (vgpr + 3) // 4 * 4
    descs.append(f""".p2align 6
.amdhsa_kernel {name}
  .amdhsa_next_free_vgpr {vgpr}
  .amdhsa_next_free_sgpr {sgpr}
  .amdhsa_accum_offset {acc}
  .amdhsa_group_segment_fixed_size 0
  .amdhsa_kernarg_size 88
  .amdhsa_user_sgpr_count 2
  .amdhsa_user_sgpr_kernarg_segment_ptr 1
  .amdhsa_system_sgpr_workgroup_id_x 1
.end_amdhsa_kernel""")

def load_args():
    A("    s_load_dwordx16 s[4:19], s[0:1], 0")
    A("    s_load_dwordx2 s[20:21], s[0:1], 64")
    A("    s_load_dwordx2 s[22:23], s[0:1], 80")
    A("    s_waitcnt lgkmcnt(0)")

LOG2E_NEG = "0xbfb8aa3b"

def silu(x, t):
    A(f"    v_mul_f32 v{t}, {LOG2E_NEG}, v{x}")
    A(f"    v_exp_f32 v{t}, v{t}")
    A(f"    s_nop 0")
    A(f"    v_add_f32 v{t}, 1.0, v{t}")
    A(f"    v_rcp_f32 v{t}, v{t}")
    A(f"    s_nop 0")
    A(f"    v_mul_f32 v{x}, v{x}, v{t}")

def k0():
    name = "egnn_k0_kernel"
    kernel_begin(name)
    load_args()
    A("    s_cmp_ge_u32 s2, 157")
    A("    s_cbranch_scc1 K0_END")
    srd(24, 6, 0, N*6)
    srd(28, 22, WS_CNT, N*4)
    srd(32, 22, WS_POS4, N*16)
    srd(36, 4, 0, N*128)
    srd(40, 14, 0, 145*128)
    srd(44, 22, WS_P1, N*256)
    srd(48, 18, 0, 128*128)
    srd(52, 22, WS_WTE, 12*1024)
    srd(56, 22, WS_WTH, 16*1024)
    A("    v_lshlrev_b32 v1, 6, s2")
    A("    v_add_u32 v1, v1, v0")
    A("    v_cmp_gt_u32 vcc, 64, v0")
    A("    s_and_saveexec_b64 s[60:61], vcc")
    A("    s_cbranch_execz K0_A_DONE")
    A("    v_mul_u32_u24 v2, 6, v1")
    A("    buffer_load_ushort v4, v2, s[24:27], 0 offen")
    A("    buffer_load_ushort v5, v2, s[24:27], 0 offen offset:2")
    A("    buffer_load_ushort v6, v2, s[24:27], 0 offen offset:4")
    A("    v_mov_b32 v7, 0")
    A("    v_lshlrev_b32 v3, 2, v1")
    A("    buffer_store_dword v7, v3, s[28:31], 0 offen")
    A("    v_lshlrev_b32 v3, 4, v1")
    A("    s_waitcnt vmcnt(1)")
    A("    v_lshlrev_b32 v4, 16, v4")
    A("    v_lshlrev_b32 v5, 16, v5")
    A("    v_lshlrev_b32 v6, 16, v6")
    A("    buffer_store_dwordx4 v[4:7], v3, s[32:35], 0 offen")
    A("K0_A_DONE:")
    A("    s_mov_b64 exec, -1")
    A("    v_and_b32 v1, 63, v0")
    A("    v_lshrrev_b32 v2, 6, v0")
    A("    v_and_b32 v3, 15, v1")
    A("    v_lshrrev_b32 v4, 4, v1")
    A("    v_lshlrev_b32 v5, 10, v4")
    A("    v_lshl_add_u32 v5, v3, 1, v5")
    A("    v_add_u32 v72, 4096, v5")
    for s in range(2):
        for j in range(4):
            for q in range(8):
                off = q*128 + j*32
                A(f"    buffer_load_ushort v{48+q}, v5, s[40:43], {4096*s} offen offset:{off}" if s == 0 else f"    buffer_load_ushort v{48+q}, v72, s[40:43], 0 offen offset:{off}")
            A("    s_waitcnt vmcnt(0)")
            b = 16 + (s*4+j)*4
            for r in range(4):
                A(f"    v_lshl_or_b32 v{b+r}, v{48+2*r+1}, 16, v{48+2*r}")
    A("    v_lshlrev_b32 v6, 6, s2")
    A("    v_lshl_add_u32 v6, v2, 4, v6")
    A("    v_add_u32 v6, v6, v3")
    A("    v_lshlrev_b32 v7, 7, v6")
    A("    v_lshl_add_u32 v7, v4, 4, v7")
    A("    buffer_load_dwordx4 v[8:11], v7, s[36:39], 0 offen")
    A("    buffer_load_dwordx4 v[12:15], v7, s[36:39], 0 offen offset:64")
    A("    s_waitcnt vmcnt(0)")
    for j in range(4):
        d = 56 + 4*j
        A(f"    v_mfma_f32_16x16x32_bf16 v[{d}:{d+3}], v[{16+j*4}:{16+j*4+3}], v[8:11], 0")
        A(f"    v_mfma_f32_16x16x32_bf16 v[{d}:{d+3}], v[{32+j*4}:{32+j*4+3}], v[12:15], v[{d}:{d+3}]")
    A("    s_nop 15")
    A("    v_lshlrev_b32 v7, 8, v6")
    A("    v_lshl_add_u32 v7, v4, 4, v7")
    for j in range(4):
        d = 56 + 4*j
        A(f"    buffer_store_dwordx4 v[{d}:{d+3}], v7, s[44:47], 0 offen offset:{j*64}")
    A("    s_cmp_ge_u32 s2, 7")
    A("    s_cbranch_scc1 K0_END")
    A("    v_lshlrev_b32 v1, 8, s2")
    A("    v_add_u32 v1, v1, v0")
    A("    v_and_b32 v2, 63, v1")
    A("    v_lshrrev_b32 v3, 6, v1")
    A("    v_and_b32 v4, 15, v2")
    A("    v_lshrrev_b32 v5, 4, v2")
    A("    v_and_b32 v6, 3, v3")
    A("    v_lshrrev_b32 v7, 2, v3")
    A("    v_lshl_add_u32 v8, v6, 4, v4")
    A("    v_lshlrev_b32 v8, 1, v8")
    A("    v_lshlrev_b32 v9, 5, v7")
    A("    v_lshl_add_u32 v9, v5, 3, v9")
    A("    v_add_u32 v10, 64, v9")
    A("    v_lshl_add_u32 v11, v5, 3, 0")
    A("    v_add_u32 v11, 129, v11")
    A("    v_cmp_eq_u32 vcc, 2, v7")
    A("    s_nop 1")
    A("    v_cndmask_b32 v10, v10, v11, vcc")
    A("    v_subrev_u32 v12, 96, v9")
    A("    v_cmp_gt_u32 vcc, 12, v3")
    A("    s_nop 1")
    A("    v_cndmask_b32 v10, v12, v10, vcc")
    A("    v_lshl_add_u32 v13, v10, 7, v8")
    for q in range(8):
        A(f"    v_mov_b32 v{16+q}, 0")
    A("    s_and_saveexec_b64 s[60:61], vcc")
    A("    s_cbranch_execz K0_C1")
    A("    v_cmp_ne_u32 vcc, 2, v7")
    A("    v_cmp_gt_u32 s[62:63], 2, v5")
    A("    s_or_b64 vcc, vcc, s[62:63]")
    A("    s_and_b64 exec, exec, vcc")
    A("    s_cbranch_execz K0_C1")
    for q in range(8):
        A(f"    buffer_load_ushort v{16+q}, v13, s[40:43], 0 offen offset:{q*128}")
    A("K0_C1:")
    A("    s_mov_b64 exec, -1")
    A("    v_cmp_eq_u32 vcc, 2, v7")
    A("    v_cmp_eq_u32 s[62:63], 2, v5")
    A("    s_and_b64 vcc, vcc, s[62:63]")
    A("    s_and_saveexec_b64 s[60:61], vcc")
    A("    s_cbranch_execz K0_C2")
    A(f"    buffer_load_ushort v16, v8, s[40:43], 0 offen offset:{0}")
    out.pop()
    A("    v_add_u32 v14, 16384, v8")
    A("    buffer_load_ushort v16, v14, s[40:43], 0 offen")
    A("K0_C2:")
    A("    s_mov_b64 exec, -1")
    A("    v_cmp_le_u32 vcc, 12, v3")
    A("    s_and_saveexec_b64 s[60:61], vcc")
    A("    s_cbranch_execz K0_C3")
    for q in range(8):
        A(f"    buffer_load_ushort v{16+q}, v13, s[48:51], 0 offen offset:{q*128}")
    A("K0_C3:")
    A("    s_mov_b64 exec, -1")
    A("    s_waitcnt vmcnt(0)")
    for r in range(4):
        A(f"    v_lshl_or_b32 v{24+r}, v{16+2*r+1}, 16, v{16+2*r}")
    A("    v_lshlrev_b32 v14, 4, v1")
    A("    buffer_store_dwordx4 v[24:27], v14, s[52:55], 0 offen")
    A("    v_subrev_u32 v15, 12288, v14")
    A("    buffer_store_dwordx4 v[24:27], v15, s[56:59], 0 offen")
    A("K0_END:")
    A("    s_endpgm")
    kernel_desc(name, 76)

G1 = 64
CH1 = E // G1
def k1():
    name = "egnn_k1_kernel"
    kernel_begin(name)
    load_args()
    A(f"    s_cmp_ge_u32 s2, {G1}")
    A("    s_cbranch_scc1 K1_END")
    srd(24, 12, 0, E*4)
    srd(28, 22, WS_CNT, N*4)
    srd(32, 22, WS_RANK, E*4)
    A("    v_mov_b32 v1, 0")
    A("    v_lshlrev_b32 v2, 2, v0")
    for i in range(10):
        A(f"    ds_write_b32 v2, v1 offset:{i*4096}")
    A(f"    s_mul_i32 s36, s2, {CH1*4}")
    A("    v_cmp_gt_u32 vcc, 784, v0")
    A("    s_mov_b64 s[40:41], vcc")
    for i in range(9):
        A(f"    buffer_load_dword v{10+i}, v2, s[24:27], s36 offen offset:{i*4096 if i*4096 < 4096 else 0}" if i == 0 else "")
    out[:] = [x for x in out if x != ""]
    for i in range(1, 10):
        A(f"    v_add_u32 v{30+i}, {i*4096}, v2")
    for i in range(1, 10):
        A(f"    buffer_load_dword v{10+i}, v{30+i}, s[24:27], s36 offen")
    A("    s_waitcnt lgkmcnt(0)")
    A("    s_barrier")
    A("    v_mov_b32 v3, 1")
    A("    s_waitcnt vmcnt(0)")
    for i in range(10):
        if i == 9:
            A("    s_mov_b64 exec, s[40:41]")
        A(f"    v_lshlrev_b32 v{10+i}, 2, v{10+i}")
        A(f"    ds_add_rtn_u32 v{20+i}, v{10+i}, v3")
    A("    s_mov_b64 exec, -1")
    A("    s_waitcnt lgkmcnt(0)")
    A("    s_barrier")
    for j in range(10):
        if j == 9:
            A("    s_mov_b64 exec, s[40:41]")
        A(f"    ds_read_b32 v{41+j}, v2 offset:{j*4096}")
    A("    s_mov_b64 exec, -1")
    A("    s_waitcnt lgkmcnt(0)")
    for j in range(10):
        if j == 9:
            A("    s_mov_b64 exec, s[40:41]")
        va = 2 if j == 0 else 30+j
        A(f"    buffer_atomic_add v{41+j}, v{va}, s[28:31], 0 offen sc0 sc1")
    A("    s_mov_b64 exec, -1")
    A("    s_waitcnt vmcnt(0)")
    for j in range(10):
        if j == 9:
            A("    s_mov_b64 exec, s[40:41]")
        A(f"    ds_write_b32 v2, v{41+j} offset:{j*4096}")
    A("    s_mov_b64 exec, -1")
    A("    s_waitcnt lgkmcnt(0)")
    A("    s_barrier")
    for i in range(10):
        if i == 9:
            A("    s_mov_b64 exec, s[40:41]")
        A(f"    ds_read_b32 v{41+i}, v{10+i}")
    A("    s_mov_b64 exec, -1")
    A("    s_waitcnt lgkmcnt(0)")
    for i in range(10):
        if i == 9:
            A("    s_mov_b64 exec, s[40:41]")
        va = 2 if i == 0 else 30+i
        A(f"    v_add_u32 v{41+i}, v{41+i}, v{20+i}")
        A(f"    buffer_store_dword v{41+i}, v{va}, s[32:35], s36 offen")
    A("K1_END:")
    A("    s_endpgm")
    kernel_desc(name, 52)

G2 = 125
CH2 = E // G2
def k2():
    name = "egnn_k2_kernel"
    kernel_begin(name)
    load_args()
    A(f"    s_cmp_ge_u32 s2, {G2}")
    A("    s_cbranch_scc1 K2_END")
    srd(24, 22, WS_CNT, N*4)
    srd(28, 22, WS_OFF, (N+1)*4)
    srd(32, 12, 0, E*4)
    srd(36, 22, WS_RANK, E*4)
    srd(40, 10, 0, E*4)
    srd(44, 22, WS_SORT, E*8)
    A(f"    s_mul_i32 s50, s2, {CH2}")
    A("    v_add_u32 v2, s50, v0")
    for i in range(5):
        A(f"    v_add_u32 v{48+i}, {i*1024}, v2")
        A(f"    v_lshlrev_b32 v3, 2, v{48+i}")
        A(f"    buffer_load_dword v{53+i}, v3, s[32:35], 0 offen")
        A(f"    buffer_load_dword v{58+i}, v3, s[36:39], 0 offen")
        A(f"    buffer_load_dword v{63+i}, v3, s[40:43], 0 offen")
    A("    v_mul_u32_u24 v1, 40, v0")
    A("    buffer_load_dwordx4 v[4:7], v1, s[24:27], 0 offen")
    A("    buffer_load_dwordx4 v[8:11], v1, s[24:27], 0 offen offset:16")
    A("    buffer_load_dwordx2 v[12:13], v1, s[24:27], 0 offen offset:32")
    A("    s_waitcnt vmcnt(0)")
    A("    v_mov_b32 v14, 0")
    for k in range(1, 10):
        A(f"    v_add_u32 v{14+k}, v{14+k-1}, v{4+k-1}")
    A("    v_add_u32 v24, v23, v13")
    A("    v_mov_b32 v25, v24")
    A("    s_nop 1")
    for sh in (1, 2, 4, 8):
        A(f"    v_add_u32_dpp v25, v25, v25 row_shr:{sh} row_mask:0xf bank_mask:0xf")
        A("    s_nop 1")
    A("    v_add_u32_dpp v25, v25, v25 row_bcast:15 row_mask:0xa bank_mask:0xf")
    A("    s_nop 1")
    A("    v_add_u32_dpp v25, v25, v25 row_bcast:31 row_mask:0xc bank_mask:0xf")
    A("    s_nop 1")
    A("    v_lshrrev_b32 v26, 6, v0")
    A("    v_and_b32 v27, 63, v0")
    A("    v_cmp_eq_u32 vcc, 63, v27")
    A("    v_lshlrev_b32 v28, 2, v26")
    A("    s_and_saveexec_b64 s[48:49], vcc")
    A("    ds_write_b32 v28, v25 offset:40960")
    A("    s_mov_b64 exec, -1")
    A("    s_waitcnt lgkmcnt(0)")
    A("    s_barrier")
    A("    v_mov_b32 v29, 0")
    A("    ds_read_b128 v[32:35], v29 offset:40960")
    A("    ds_read_b128 v[36:39], v29 offset:40976")
    A("    ds_read_b128 v[40:43], v29 offset:40992")
    A("    ds_read_b128 v[44:47], v29 offset:41008")
    A("    s_waitcnt lgkmcnt(0)")
    A("    v_sub_u32 v30, v25, v24")
    for w in range(15):
        A(f"    v_cmp_lt_u32 vcc, {w}, v26")
        A("    s_nop 1")
        A(f"    v_cndmask_b32 v31, 0, v{32+w}, vcc")
        A("    v_add_u32 v30, v30, v31")
    A("    v_cmp_gt_u32 vcc, 1000, v0")
    A("    s_and_saveexec_b64 s[48:49], vcc")
    for k in range(10):
        A(f"    v_add_u32 v{14+k}, v{14+k}, v30")
        A(f"    ds_write_b32 v1, v{14+k} offset:{4*k}")
    A("    s_cmp_lg_u32 s2, 0")
    A("    s_cbranch_scc1 K2_NOOFF")
    A("    buffer_store_dwordx4 v[14:17], v1, s[28:31], 0 offen")
    A("    buffer_store_dwordx4 v[18:21], v1, s[28:31], 0 offen offset:16")
    A("    buffer_store_dwordx2 v[22:23], v1, s[28:31], 0 offen offset:32")
    A("    v_cmp_eq_u32 vcc, 999, v0")
    A("    s_and_b64 exec, exec, vcc")
    A("    v_add_u32 v31, v30, v24")
    A("    buffer_store_dword v31, v1, s[28:31], 0 offen offset:40")
    A("K2_NOOFF:")
    A("    s_mov_b64 exec, -1")
    A("    s_waitcnt lgkmcnt(0)")
    A("    s_barrier")
    A("    s_waitcnt vmcnt(0)")
    for i in range(5):
        A(f"    v_lshlrev_b32 v{53+i}, 2, v{53+i}")
        A(f"    ds_read_b32 v{53+i}, v{53+i}")
    A("    s_waitcnt lgkmcnt(0)")
    for i in range(5):
        A(f"    v_add_u32 v{53+i}, v{53+i}, v{58+i}")
        A(f"    v_lshlrev_b32 v{53+i}, 3, v{53+i}")
        A(f"    v_mov_b32 v{70+2*i}, v{63+i}")
        A(f"    v_mov_b32 v{71+2*i}, v{48+i}")
    for i in range(5):
        A(f"    buffer_store_dwordx2 v[{70+2*i}:{71+2*i}], v{53+i}, s[44:47], 0 offen")
    A("K2_END:")
    A("    s_endpgm")
    kernel_desc(name, 80)

K3_WGS = 512
NW3 = K3_WGS * 4
def k3():
    name = "egnn_k3_kernel"
    kernel_begin(name)
    load_args()
    A(f"    s_cmp_ge_u32 s2, {K3_WGS}")
    A("    s_cbranch_scc1 K3_END")
    srd(24, 22, WS_WTE, 12*1024)
    srd(28, 16, 0, 128)
    srd(32, 22, WS_SORT, E*8)
    srd(36, 4, 0, N*128)
    srd(40, 8, 0, E*32)
    srd(44, 22, WS_POS4, N*16)
    srd(48, 22, WS_P1, N*256)
    srd(52, 22, WS_MI, N*128)
    srd(56, 20, N*128, N*6)
    A(f"    s_add_u32 s60, s22, {WS_OFF:#x}")
    A("    s_addc_u32 s61, s23, 0")
    A("    v_and_b32 v1, 63, v0")
    A("    v_lshrrev_b32 v2, 6, v0")
    A("    v_and_b32 v3, 15, v1")
    A("    v_lshrrev_b32 v4, 4, v1")
    A("    v_lshlrev_b32 v5, 4, v4")
    A("    v_lshlrev_b32 v6, 3, v4")
    A("    v_mov_b32 v7, 0")
    A("    v_cmp_gt_u32 s[74:75], 2, v4")
    A("    v_cmp_eq_u32 s[76:77], 2, v4")
    A("    v_cmp_eq_u32 s[78:79], 0, v3")
    A("    v_cmp_eq_u32 s[80:81], 63, v1")
    A(f"    s_mov_b32 s88, {LOG2E_NEG}")
    A(f"    s_mov_b32 s89, {LOG2E_NEG}")
    A("    v_readfirstlane_b32 s62, v2")
    A("    s_lshl_b32 s63, s2, 2")
    A("    s_add_u32 s62, s62, s63")
    A("    s_lshl_b32 s63, s62, 2")
    A("    s_load_dwordx2 s[84:85], s[60:61], s63")
    A(f"    s_add_u32 s63, s63, {NW3*4}")
    A("    s_load_dwordx2 s[82:83], s[60:61], s63")
    A("    v_lshlrev_b32 v8, 4, v1")
    for t in range(12):
        if t*1024 < 4096:
            A(f"    buffer_load_dwordx4 v[{64+4*t}:{64+4*t+3}], v8, s[24:27], 0 offen offset:{t*1024}")
        else:
            A(f"    v_add_u32 v9, {t*1024}, v8")
            A(f"    buffer_load_dwordx4 v[{64+4*t}:{64+4*t+3}], v9, s[24:27], 0 offen")
    for j in range(4):
        A(f"    buffer_load_dwordx2 v[{48+2*j}:{48+2*j+1}], v6, s[28:31], 0 offen offset:{j*32}")
    A("    s_waitcnt vmcnt(0)")
    for j in range(4):
        A(f"    v_lshlrev_b32 v{112+4*j}, 16, v{48+2*j}")
        A(f"    v_and_b32 v{112+4*j+1}, 0xffff0000, v{48+2*j}")
        A(f"    v_lshlrev_b32 v{112+4*j+2}, 16, v{48+2*j+1}")
        A(f"    v_and_b32 v{112+4*j+3}, 0xffff0000, v{48+2*j+1}")
    for r in range(16):
        A(f"    v_mov_b32 v{32+r}, 0")
    for c in range(3):
        A(f"    v_mov_b32 v{28+c}, 0")
    A("    s_waitcnt lgkmcnt(0)")
    A("    s_mov_b32 s70, s62")
    A("    s_mov_b32 s71, s84")
    A("    s_mov_b32 s72, s85")

    BUF = lambda p: 128 + 56*p
    H0 = lambda p, tt: BUF(p) + 16*tt
    H1 = lambda p, tt: BUF(p) + 16*tt + 4
    AT = lambda p, tt: BUF(p) + 16*tt + 8
    PS = lambda p, tt: BUF(p) + 16*tt + 12
    P1C = lambda p: BUF(p) + 32
    PN = lambda p: BUF(p) + 48
    IDX = lambda p: BUF(p) + 52
    uid = [0]

    def gen_item():
        uid[0] += 1
        u = uid[0]
        A("    s_mov_b32 s64, s67\n    s_mov_b32 s65, s68\n    s_mov_b32 s66, s69")
        A("    s_mov_b32 s67, s70\n    s_mov_b32 s68, s71\n    s_mov_b32 s69, s72")
        A("    s_add_u32 s71, s71, 32")
        A("    s_cmp_lt_u32 s71, s72")
        A(f"    s_cbranch_scc1 K3_GI{u}")
        A(f"    s_add_u32 s70, s70, {NW3}")
        A("    s_waitcnt lgkmcnt(0)")
        A("    s_mov_b32 s71, s82")
        A("    s_mov_b32 s72, s83")
        A(f"    s_cmp_lt_u32 s70, {N}")
        A(f"    s_cbranch_scc1 K3_GV{u}")
        A(f"    s_mov_b32 s70, {N}")
        A("    s_mov_b32 s71, 0")
        A("    s_mov_b32 s72, 0")
        A(f"K3_GV{u}:")
        A(f"    s_add_u32 s63, s70, {NW3}")
        A(f"    s_min_u32 s63, s63, {N-1}")
        A("    s_lshl_b32 s63, s63, 2")
        A("    s_load_dwordx2 s[82:83], s[60:61], s63")
        A(f"K3_GI{u}:")

    def issue_idx(p):
        A("    v_add_u32 v8, s71, v3")
        A("    v_lshlrev_b32 v8, 3, v8")
        A(f"    buffer_load_dwordx2 v[{IDX(p)}:{IDX(p)+1}], v8, s[32:35], 0 offen")
        A(f"    buffer_load_dwordx2 v[{IDX(p)+2}:{IDX(p)+3}], v8, s[32:35], 0 offen offset:128")

    def issue_gather(p, nreg):
        for tt in range(2):
            sv, ev = IDX(p)+2*tt, IDX(p)+2*tt+1
            A(f"    v_lshl_add_u32 v8, v{sv}, 7, v5")
            A(f"    buffer_load_dwordx4 v[{H0(p,tt)}:{H0(p,tt)+3}], v8, s[36:39], 0 offen")
            A(f"    buffer_load_dwordx4 v[{H1(p,tt)}:{H1(p,tt)+3}], v8, s[36:39], 0 offen offset:64")
            A(f"    v_lshl_add_u32 v9, v{ev}, 5, v5")
            A(f"    v_cndmask_b32 v9, -1, v9, s[74:75]")
            A(f"    buffer_load_dwordx4 v[{AT(p,tt)}:{AT(p,tt)+3}], v9, s[40:43], 0 offen")
            A(f"    v_lshlrev_b32 v10, 4, v{sv}")
            A(f"    buffer_load_dwordx4 v[{PS(p,tt)}:{PS(p,tt)+3}], v10, s[44:47], 0 offen")
        A(f"    s_lshl_b32 s73, s{nreg}, 8")
        for j in range(4):
            A(f"    buffer_load_dwordx4 v[{P1C(p)+4*j}:{P1C(p)+4*j+3}], v5, s[48:51], s73 offen offset:{64*j}")
        A(f"    s_lshl_b32 s73, s{nreg}, 4")
        A(f"    buffer_load_dwordx4 v[{PN(p)}:{PN(p)+3}], v7, s[44:47], s73 offen")

    def compute(p):
        uid[0] += 1
        u = uid[0]
        for tt in range(2):
            if tt == 1:
                A("    s_add_u32 s73, s65, 16")
                A("    s_cmp_ge_u32 s73, s66")
                A(f"    s_cbranch_scc1 K3_SKIP{u}")
            ps = PS(p, tt); pn = PN(p); at = AT(p, tt)
            A(f"    v_add_u32 v8, s65, v3")
            if tt: A("    v_add_u32 v8, 16, v8")
            A("    v_cmp_gt_u32 s[86:87], s66, v8")
            for c in range(3):
                A(f"    v_sub_f32 v{16+c}, v{pn+c}, v{ps+c}")
            A("    v_cvt_pk_bf16_f32 v15, v16, v17")
            A("    v_cvt_pk_bf16_f32 v19, v18, v18")
            A("    v_lshlrev_b32 v16, 16, v15")
            A("    v_and_b32 v17, 0xffff0000, v15")
            A("    v_lshlrev_b32 v18, 16, v19")
            A("    v_mul_f32 v20, v16, v16")
            A("    v_fmac_f32 v20, v17, v17")
            A("    v_fmac_f32 v20, v18, v18")
            A("    v_cvt_pk_bf16_f32 v15, v20, v20")
            A("    v_and_b32 v15, 0xffff, v15")
            A(f"    v_cndmask_b32 v{at}, v{at}, v15, s[76:77]")
            for j in range(4):
                d = 48 + 4*j
                A(f"    v_mfma_f32_16x16x32_bf16 v[{d}:{d+3}], v[{64+4*j}:{64+4*j+3}], v[{H0(p,tt)}:{H0(p,tt)+3}], v[{P1C(p)+4*j}:{P1C(p)+4*j+3}]")
            for j in range(4):
                d = 48 + 4*j
                A(f"    v_mfma_f32_16x16x32_bf16 v[{d}:{d+3}], v[{80+4*j}:{80+4*j+3}], v[{H1(p,tt)}:{H1(p,tt)+3}], v[{d}:{d+3}]")
            for j in range(4):
                d = 48 + 4*j
                A(f"    v_mfma_f32_16x16x32_bf16 v[{d}:{d+3}], v[{96+4*j}:{96+4*j+3}], v[{at}:{at+3}], v[{d}:{d+3}]")
            A("    s_nop 4")
            for half in range(2):
                x = 48 + 8*half
                for r in range(0, 8, 2):
                    A(f"    v_pk_mul_f32 v[{20+r}:{21+r}], v[{x+r}:{x+r+1}], s[88:89]")
                for r in range(8):
                    A(f"    v_exp_f32 v{20+r}, v{20+r}")
                for r in range(0, 8, 2):
                    A(f"    v_pk_add_f32 v[{20+r}:{21+r}], v[{20+r}:{21+r}], 1.0 op_sel_hi:[1,0]")
                for r in range(8):
                    A(f"    v_rcp_f32 v{20+r}, v{20+r}")
                for r in range(0, 8, 2):
                    A(f"    v_pk_mul_f32 v[{x+r}:{x+r+1}], v[{x+r}:{x+r+1}], v[{20+r}:{21+r}]")
            A("    s_mov_b64 exec, s[86:87]")
            for r in range(0, 16, 2):
                A(f"    v_pk_add_f32 v[{32+r}:{33+r}], v[{32+r}:{33+r}], v[{48+r}:{49+r}]")
                if r == 0:
                    A(f"    v_pk_mul_f32 v[20:21], v[112:113], v[48:49]")
                else:
                    A(f"    v_pk_fma_f32 v[20:21], v[{112+r}:{113+r}], v[{48+r}:{49+r}], v[20:21]")
            A("    v_add_f32 v15, v20, v21")
            for c in range(3):
                A(f"    v_fmac_f32 v{28+c}, v{16+c}, v15")
            A("    s_mov_b64 exec, -1")
        A(f"K3_SKIP{u}:")
        A("    s_add_u32 s73, s65, 32")
        A("    s_cmp_lt_u32 s73, s66")
        A(f"    s_cbranch_scc1 K3_NOFIN{u}")
        for sh in (8, 4, 2, 1):
            for r in range(16):
                A(f"    v_add_f32_dpp v{32+r}, v{32+r}, v{32+r} row_ror:{sh} row_mask:0xf bank_mask:0xf")
            for c in range(3):
                A(f"    v_add_f32_dpp v{28+c}, v{28+c}, v{28+c} row_ror:{sh} row_mask:0xf bank_mask:0xf")
        A("    s_nop 1")
        for c in range(3):
            A(f"    v_add_f32_dpp v{28+c}, v{28+c}, v{28+c} row_bcast:15 row_mask:0xa bank_mask:0xf")
        A("    s_nop 1")
        for c in range(3):
            A(f"    v_add_f32_dpp v{28+c}, v{28+c}, v{28+c} row_bcast:31 row_mask:0xc bank_mask:0xf")
        for j in range(4):
            A(f"    v_cvt_pk_bf16_f32 v{48+2*j}, v{32+4*j}, v{32+4*j+1}")
            A(f"    v_cvt_pk_bf16_f32 v{48+2*j+1}, v{32+4*j+2}, v{32+4*j+3}")
        for c in range(3):
            A(f"    v_add_f32 v{28+c}, v{28+c}, v{PN(p)+c}")
        A("    v_cvt_pk_bf16_f32 v56, v28, v29")
        A("    v_cvt_pk_bf16_f32 v57, v30, v30")
        A("    v_lshrrev_b32 v58, 16, v56")
        A("    s_lshl_b32 s73, s64, 7")
        A("    s_mov_b64 exec, s[78:79]")
        for j in range(4):
            A(f"    buffer_store_dwordx2 v[{48+2*j}:{48+2*j+1}], v6, s[52:55], s73 offen offset:{32*j}")
        A("    s_mul_i32 s73, s64, 6")
        A("    s_mov_b64 exec, s[80:81]")
        A("    buffer_store_short v56, v7, s[56:59], s73 offen")
        A("    buffer_store_short v58, v7, s[56:59], s73 offen offset:2")
        A("    buffer_store_short v57, v7, s[56:59], s73 offen offset:4")
        A("    s_mov_b64 exec, -1")
        for r in range(16):
            A(f"    v_mov_b32 v{32+r}, 0")
        for c in range(3):
            A(f"    v_mov_b32 v{28+c}, 0")
        A(f"K3_NOFIN{u}:")

    issue_idx(0)
    gen_item()
    issue_idx(1)
    A("    s_waitcnt vmcnt(2)")
    issue_gather(0, 67)
    A("K3_LOOP:")
    for p in range(2):
        gen_item()
        A(f"    s_cmp_ge_u32 s64, {N}")
        A("    s_cbranch_scc1 K3_END")
        issue_idx(p)
        A("    s_waitcnt vmcnt(15)")
        issue_gather(1-p, 67)
        A("    s_waitcnt vmcnt(15)")
        compute(p)
    A("    s_branch K3_LOOP")
    A("K3_END:")
    A("    s_endpgm")
    kernel_desc(name, 240)

def k4():
    name = "egnn_k4_kernel"
    kernel_begin(name)
    load_args()
    A("    s_cmp_ge_u32 s2, 157")
    A("    s_cbranch_scc1 K4_END")
    srd(24, 22, WS_WTH, 16*1024)
    srd(28, 4, 0, N*128)
    srd(32, 22, WS_MI, N*128)
    srd(36, 20, 0, N*128)
    A("    v_and_b32 v1, 63, v0")
    A("    v_lshrrev_b32 v2, 6, v0")
    A("    v_and_b32 v3, 15, v1")
    A("    v_lshrrev_b32 v4, 4, v1")
    A("    v_lshlrev_b32 v6, 4, v1")
    for t in range(16):
        if t*1024 < 4096:
            A(f"    buffer_load_dwordx4 v[{64+4*t}:{64+4*t+3}], v6, s[24:27], 0 offen offset:{t*1024}")
        else:
            A(f"    v_add_u32 v7, {t*1024}, v6")
            A(f"    buffer_load_dwordx4 v[{64+4*t}:{64+4*t+3}], v7, s[24:27], 0 offen")
    A("    v_lshlrev_b32 v6, 6, s2")
    A("    v_lshl_add_u32 v6, v2, 4, v6")
    A("    v_add_u32 v6, v6, v3")
    A("    v_lshlrev_b32 v7, 7, v6")
    A("    v_lshl_add_u32 v8, v4, 4, v7")
    A("    buffer_load_dwordx4 v[16:19], v8, s[28:31], 0 offen")
    A("    buffer_load_dwordx4 v[20:23], v8, s[28:31], 0 offen offset:64")
    A("    buffer_load_dwordx4 v[24:27], v8, s[32:35], 0 offen")
    A("    buffer_load_dwordx4 v[28:31], v8, s[32:35], 0 offen offset:64")
    A("    v_lshl_add_u32 v9, v4, 3, v7")
    for j in range(4):
        A(f"    buffer_load_dwordx2 v[{32+2*j}:{32+2*j+1}], v9, s[28:31], 0 offen offset:{32*j}")
    A("    s_waitcnt vmcnt(0)")
    for j in range(4):
        d = 48 + 4*j
        for s in range(4):
            c = "0" if s == 0 else f"v[{d}:{d+3}]"
            A(f"    v_mfma_f32_16x16x32_bf16 v[{d}:{d+3}], v[{64+16*s+4*j}:{64+16*s+4*j+3}], v[{16+4*s}:{16+4*s+3}], {c}")
    A("    s_nop 15")
    for r in range(16):
        silu(48+r, 15)
    for j in range(4):
        A(f"    v_cvt_pk_bf16_f32 v40, v{48+4*j}, v{48+4*j+1}")
        A(f"    v_cvt_pk_bf16_f32 v41, v{48+4*j+2}, v{48+4*j+3}")
        A(f"    v_lshlrev_b32 v42, 16, v40")
        A(f"    v_and_b32 v43, 0xffff0000, v40")
        A(f"    v_lshlrev_b32 v44, 16, v41")
        A(f"    v_and_b32 v45, 0xffff0000, v41")
        A(f"    v_lshlrev_b32 v46, 16, v{32+2*j}")
        A(f"    v_add_f32 v42, v42, v46")
        A(f"    v_and_b32 v46, 0xffff0000, v{32+2*j}")
        A(f"    v_add_f32 v43, v43, v46")
        A(f"    v_lshlrev_b32 v46, 16, v{32+2*j+1}")
        A(f"    v_add_f32 v44, v44, v46")
        A(f"    v_and_b32 v46, 0xffff0000, v{32+2*j+1}")
        A(f"    v_add_f32 v45, v45, v46")
        A(f"    v_cvt_pk_bf16_f32 v{10+2*j}, v42, v43")
        A(f"    v_cvt_pk_bf16_f32 v{10+2*j+1}, v44, v45")
    for j in range(4):
        A(f"    buffer_store_dwordx2 v[{10+2*j}:{10+2*j+1}], v9, s[36:39], 0 offen offset:{32*j}")
    A("K4_END:")
    A("    s_endpgm")
    kernel_desc(name, 128)

hdr = open("gather_scatter__cheap_equivariant_egnn__graph.s.ref").read().split("; @launch")[0]
A(hdr.rstrip("\n"))
A("; @launch kernel=egnn_k0_kernel grid=(157,1,1) block=(256,1,1) lds=0")
A(f"; @launch kernel=egnn_k1_kernel grid=({G1},1,1) block=(1024,1,1) lds=40960")
A(f"; @launch kernel=egnn_k2_kernel grid=({G2},1,1) block=(1024,1,1) lds=41024")
A(f"; @launch kernel=egnn_k3_kernel grid=({K3_WGS},1,1) block=(256,1,1) lds=0")
A("; @launch kernel=egnn_k4_kernel grid=(157,1,1) block=(256,1,1) lds=0")
A('.amdgcn_target "amdgcn-amd-amdhsa--gfx950"')
A(".text")
k0(); k1(); k2(); k3(); k4()
A('.section .rodata,"a"')
for d in descs:
    A(d)
open("gather_scatter__cheap_equivariant_egnn__graph.s", "w").write("\n".join(out) + "\n")
```

```python
import sys

N = 10000
E = 640000
WS_CNT  = 0
WS_RANK = 0x10000
WS_OFF  = 0x290000
WS_SORT = 0x2A0000
WS_POS4 = 0x790000
WS_MI   = 0x7C0000
WS_P1   = 0xA40000
WS_WTE  = 0xCC0000
WS_WTH  = 0xCC4000

out = []
def A(s=""):
    out.append(s)

def srd(dst, ptr, off, size):
    if off:
        A(f"    s_add_u32 s{dst}, s{ptr}, {off:#x}")
        A(f"    s_addc_u32 s{dst+1}, s{ptr+1}, 0")
    else:
        A(f"    s_mov_b32 s{dst}, s{ptr}")
        A(f"    s_mov_b32 s{dst+1}, s{ptr+1}")
    A(f"    s_mov_b32 s{dst+2}, {size}")
    A(f"    s_mov_b32 s{dst+3}, 0x00020000")

def kernel_begin(name):
    A(f".globl {name}")
    A(".p2align 8")
    A(f".type {name},@function")
    A(f"{name}:")

descs = []
def kernel_desc(name, vgpr, sgpr=96):
    acc = (vgpr + 3) // 4 * 4
    descs.append(f""".p2align 6
.amdhsa_kernel {name}
  .amdhsa_next_free_vgpr {vgpr}
  .amdhsa_next_free_sgpr {sgpr}
  .amdhsa_accum_offset {acc}
  .amdhsa_group_segment_fixed_size 0
  .amdhsa_kernarg_size 88
  .amdhsa_user_sgpr_count 2
  .amdhsa_user_sgpr_kernarg_segment_ptr 1
  .amdhsa_system_sgpr_workgroup_id_x 1
.end_amdhsa_kernel""")

def load_args():
    A("    s_load_dwordx16 s[4:19], s[0:1], 0")
    A("    s_load_dwordx2 s[20:21], s[0:1], 64")
    A("    s_load_dwordx2 s[22:23], s[0:1], 80")
    A("    s_waitcnt lgkmcnt(0)")

LOG2E_NEG = "0xbfb8aa3b"

def silu(x, t):
    A(f"    v_mul_f32 v{t}, {LOG2E_NEG}, v{x}")
    A(f"    v_exp_f32 v{t}, v{t}")
    A(f"    s_nop 0")
    A(f"    v_add_f32 v{t}, 1.0, v{t}")
    A(f"    v_rcp_f32 v{t}, v{t}")
    A(f"    s_nop 0")
    A(f"    v_mul_f32 v{x}, v{x}, v{t}")

def k0():
    name = "egnn_k0_kernel"
    kernel_begin(name)
    load_args()
    A("    s_cmp_ge_u32 s2, 157")
    A("    s_cbranch_scc1 K0_END")
    srd(24, 6, 0, N*6)
    srd(28, 22, WS_CNT, N*4)
    srd(32, 22, WS_POS4, N*16)
    srd(36, 4, 0, N*128)
    srd(40, 14, 0, 145*128)
    srd(44, 22, WS_P1, N*256)
    srd(48, 18, 0, 128*128)
    srd(52, 22, WS_WTE, 12*1024)
    srd(56, 22, WS_WTH, 16*1024)
    A("    v_lshlrev_b32 v1, 6, s2")
    A("    v_add_u32 v1, v1, v0")
    A("    v_cmp_gt_u32 vcc, 64, v0")
    A("    s_and_saveexec_b64 s[60:61], vcc")
    A("    s_cbranch_execz K0_A_DONE")
    A("    v_mul_u32_u24 v2, 6, v1")
    A("    buffer_load_ushort v4, v2, s[24:27], 0 offen")
    A("    buffer_load_ushort v5, v2, s[24:27], 0 offen offset:2")
    A("    buffer_load_ushort v6, v2, s[24:27], 0 offen offset:4")
    A("    v_mov_b32 v7, 0")
    A("    v_lshlrev_b32 v3, 2, v1")
    A("    buffer_store_dword v7, v3, s[28:31], 0 offen")
    A("    v_lshlrev_b32 v3, 4, v1")
    A("    s_waitcnt vmcnt(1)")
    A("    v_lshlrev_b32 v4, 16, v4")
    A("    v_lshlrev_b32 v5, 16, v5")
    A("    v_lshlrev_b32 v6, 16, v6")
    A("    buffer_store_dwordx4 v[4:7], v3, s[32:35], 0 offen")
    A("K0_A_DONE:")
    A("    s_mov_b64 exec, -1")
    A("    v_and_b32 v1, 63, v0")
    A("    v_lshrrev_b32 v2, 6, v0")
    A("    v_and_b32 v3, 15, v1")
    A("    v_lshrrev_b32 v4, 4, v1")
    A("    v_lshlrev_b32 v5, 10, v4")
    A("    v_lshl_add_u32 v5, v3, 1, v5")
    A("    v_add_u32 v72, 4096, v5")
    for s in range(2):
        for j in range(4):
            for q in range(8):
                off = q*128 + j*32
                A(f"    buffer_load_ushort v{48+q}, v5, s[40:43], {4096*s} offen offset:{off}" if s == 0 else f"    buffer_load_ushort v{48+q}, v72, s[40:43], 0 offen offset:{off}")
            A("    s_waitcnt vmcnt(0)")
            b = 16 + (s*4+j)*4
            for r in range(4):
                A(f"    v_lshl_or_b32 v{b+r}, v{48+2*r+1}, 16, v{48+2*r}")
    A("    v_lshlrev_b32 v6, 6, s2")
    A("    v_lshl_add_u32 v6, v2, 4, v6")
    A("    v_add_u32 v6, v6, v3")
    A("    v_lshlrev_b32 v7, 7, v6")
    A("    v_lshl_add_u32 v7, v4, 4, v7")
    A("    buffer_load_dwordx4 v[8:11], v7, s[36:39], 0 offen")
    A("    buffer_load_dwordx4 v[12:15], v7, s[36:39], 0 offen offset:64")
    A("    s_waitcnt vmcnt(0)")
    for j in range(4):
        d = 56 + 4*j
        A(f"    v_mfma_f32_16x16x32_bf16 v[{d}:{d+3}], v[{16+j*4}:{16+j*4+3}], v[8:11], 0")
        A(f"    v_mfma_f32_16x16x32_bf16 v[{d}:{d+3}], v[{32+j*4}:{32+j*4+3}], v[12:15], v[{d}:{d+3}]")
    A("    s_nop 15")
    A("    v_lshlrev_b32 v7, 8, v6")
    A("    v_lshl_add_u32 v7, v4, 4, v7")
    for j in range(4):
        d = 56 + 4*j
        A(f"    buffer_store_dwordx4 v[{d}:{d+3}], v7, s[44:47], 0 offen offset:{j*64}")
    A("    s_cmp_ge_u32 s2, 7")
    A("    s_cbranch_scc1 K0_END")
    A("    v_lshlrev_b32 v1, 8, s2")
    A("    v_add_u32 v1, v1, v0")
    A("    v_and_b32 v2, 63, v1")
    A("    v_lshrrev_b32 v3, 6, v1")
    A("    v_and_b32 v4, 15, v2")
    A("    v_lshrrev_b32 v5, 4, v2")
    A("    v_and_b32 v6, 3, v3")
    A("    v_lshrrev_b32 v7, 2, v3")
    A("    v_lshl_add_u32 v8, v6, 4, v4")
    A("    v_lshlrev_b32 v8, 1, v8")
    A("    v_lshlrev_b32 v9, 5, v7")
    A("    v_lshl_add_u32 v9, v5, 3, v9")
    A("    v_add_u32 v10, 64, v9")
    A("    v_lshl_add_u32 v11, v5, 3, 0")
    A("    v_add_u32 v11, 129, v11")
    A("    v_cmp_eq_u32 vcc, 2, v7")
    A("    s_nop 1")
    A("    v_cndmask_b32 v10, v10, v11, vcc")
    A("    v_subrev_u32 v12, 96, v9")
    A("    v_cmp_gt_u32 vcc, 12, v3")
    A("    s_nop 1")
    A("    v_cndmask_b32 v10, v12, v10, vcc")
    A("    v_lshl_add_u32 v13, v10, 7, v8")
    for q in range(8):
        A(f"    v_mov_b32 v{16+q}, 0")
    A("    s_and_saveexec_b64 s[60:61], vcc")
    A("    s_cbranch_execz K0_C1")
    A("    v_cmp_ne_u32 vcc, 2, v7")
    A("    v_cmp_gt_u32 s[62:63], 2, v5")
    A("    s_or_b64 vcc, vcc, s[62:63]")
    A("    s_and_b64 exec, exec, vcc")
    A("    s_cbranch_execz K0_C1")
    for q in range(8):
        A(f"    buffer_load_ushort v{16+q}, v13, s[40:43], 0 offen offset:{q*128}")
    A("K0_C1:")
    A("    s_mov_b64 exec, -1")
    A("    v_cmp_eq_u32 vcc, 2, v7")
    A("    v_cmp_eq_u32 s[62:63], 2, v5")
    A("    s_and_b64 vcc, vcc, s[62:63]")
    A("    s_and_saveexec_b64 s[60:61], vcc")
    A("    s_cbranch_execz K0_C2")
    A(f"    buffer_load_ushort v16, v8, s[40:43], 0 offen offset:{0}")
    out.pop()
    A("    v_add_u32 v14, 16384, v8")
    A("    buffer_load_ushort v16, v14, s[40:43], 0 offen")
    A("K0_C2:")
    A("    s_mov_b64 exec, -1")
    A("    v_cmp_le_u32 vcc, 12, v3")
    A("    s_and_saveexec_b64 s[60:61], vcc")
    A("    s_cbranch_execz K0_C3")
    for q in range(8):
        A(f"    buffer_load_ushort v{16+q}, v13, s[48:51], 0 offen offset:{q*128}")
    A("K0_C3:")
    A("    s_mov_b64 exec, -1")
    A("    s_waitcnt vmcnt(0)")
    for r in range(4):
        A(f"    v_lshl_or_b32 v{24+r}, v{16+2*r+1}, 16, v{16+2*r}")
    A("    v_lshlrev_b32 v14, 4, v1")
    A("    buffer_store_dwordx4 v[24:27], v14, s[52:55], 0 offen")
    A("    v_subrev_u32 v15, 12288, v14")
    A("    buffer_store_dwordx4 v[24:27], v15, s[56:59], 0 offen")
    A("K0_END:")
    A("    s_endpgm")
    kernel_desc(name, 76)

G1 = 64
CH1 = E // G1
def k1():
    name = "egnn_k1_kernel"
    kernel_begin(name)
    load_args()
    A(f"    s_cmp_ge_u32 s2, {G1}")
    A("    s_cbranch_scc1 K1_END")
    srd(24, 12, 0, E*4)
    srd(28, 22, WS_CNT, N*4)
    srd(32, 22, WS_RANK, E*4)
    A("    v_mov_b32 v1, 0")
    A("    v_lshlrev_b32 v2, 2, v0")
    for i in range(10):
        A(f"    ds_write_b32 v2, v1 offset:{i*4096}")
    A(f"    s_mul_i32 s36, s2, {CH1*4}")
    A("    v_cmp_gt_u32 vcc, 784, v0")
    A("    s_mov_b64 s[40:41], vcc")
    for i in range(9):
        A(f"    buffer_load_dword v{10+i}, v2, s[24:27], s36 offen offset:{i*4096 if i*4096 < 4096 else 0}" if i == 0 else "")
    out[:] = [x for x in out if x != ""]
    for i in range(1, 10):
        A(f"    v_add_u32 v{30+i}, {i*4096}, v2")
    for i in range(1, 10):
        A(f"    buffer_load_dword v{10+i}, v{30+i}, s[24:27], s36 offen")
    A("    s_waitcnt lgkmcnt(0)")
    A("    s_barrier")
    A("    v_mov_b32 v3, 1")
    A("    s_waitcnt vmcnt(0)")
    for i in range(10):
        if i == 9:
            A("    s_mov_b64 exec, s[40:41]")
        A(f"    v_lshlrev_b32 v{10+i}, 2, v{10+i}")
        A(f"    ds_add_rtn_u32 v{20+i}, v{10+i}, v3")
    A("    s_mov_b64 exec, -1")
    A("    s_waitcnt lgkmcnt(0)")
    A("    s_barrier")
    for j in range(10):
        if j == 9:
            A("    s_mov_b64 exec, s[40:41]")
        A(f"    ds_read_b32 v{41+j}, v2 offset:{j*4096}")
    A("    s_mov_b64 exec, -1")
    A("    s_waitcnt lgkmcnt(0)")
    for j in range(10):
        if j == 9:
            A("    s_mov_b64 exec, s[40:41]")
        va = 2 if j == 0 else 30+j
        A(f"    buffer_atomic_add v{41+j}, v{va}, s[28:31], 0 offen sc0 sc1")
    A("    s_mov_b64 exec, -1")
    A("    s_waitcnt vmcnt(0)")
    for j in range(10):
        if j == 9:
            A("    s_mov_b64 exec, s[40:41]")
        A(f"    ds_write_b32 v2, v{41+j} offset:{j*4096}")
    A("    s_mov_b64 exec, -1")
    A("    s_waitcnt lgkmcnt(0)")
    A("    s_barrier")
    for i in range(10):
        if i == 9:
            A("    s_mov_b64 exec, s[40:41]")
        A(f"    ds_read_b32 v{41+i}, v{10+i}")
    A("    s_mov_b64 exec, -1")
    A("    s_waitcnt lgkmcnt(0)")
    for i in range(10):
        if i == 9:
            A("    s_mov_b64 exec, s[40:41]")
        va = 2 if i == 0 else 30+i
        A(f"    v_add_u32 v{41+i}, v{41+i}, v{20+i}")
        A(f"    buffer_store_dword v{41+i}, v{va}, s[32:35], s36 offen")
    A("K1_END:")
    A("    s_endpgm")
    kernel_desc(name, 52)

G2 = 125
CH2 = E // G2
def k2():
    name = "egnn_k2_kernel"
    kernel_begin(name)
    load_args()
    A(f"    s_cmp_ge_u32 s2, {G2}")
    A("    s_cbranch_scc1 K2_END")
    srd(24, 22, WS_CNT, N*4)
    srd(28, 22, WS_OFF, (N+1)*4)
    srd(32, 12, 0, E*4)
    srd(36, 22, WS_RANK, E*4)
    srd(40, 10, 0, E*4)
    srd(44, 22, WS_SORT, E*8)
    A(f"    s_mul_i32 s50, s2, {CH2}")
    A("    v_add_u32 v2, s50, v0")
    for i in range(5):
        A(f"    v_add_u32 v{48+i}, {i*1024}, v2")
        A(f"    v_lshlrev_b32 v3, 2, v{48+i}")
        A(f"    buffer_load_dword v{53+i}, v3, s[32:35], 0 offen")
        A(f"    buffer_load_dword v{58+i}, v3, s[36:39], 0 offen")
        A(f"    buffer_load_dword v{63+i}, v3, s[40:43], 0 offen")
    A("    v_mul_u32_u24 v1, 40, v0")
    A("    buffer_load_dwordx4 v[4:7], v1, s[24:27], 0 offen")
    A("    buffer_load_dwordx4 v[8:11], v1, s[24:27], 0 offen offset:16")
    A("    buffer_load_dwordx2 v[12:13], v1, s[24:27], 0 offen offset:32")
    A("    s_waitcnt vmcnt(0)")
    A("    v_mov_b32 v14, 0")
    for k in range(1, 10):
        A(f"    v_add_u32 v{14+k}, v{14+k-1}, v{4+k-1}")
    A("    v_add_u32 v24, v23, v13")
    A("    v_mov_b32 v25, v24")
    A("    s_nop 1")
    for sh in (1, 2, 4, 8):
        A(f"    v_add_u32_dpp v25, v25, v25 row_shr:{sh} row_mask:0xf bank_mask:0xf")
        A("    s_nop 1")
    A("    v_add_u32_dpp v25, v25, v25 row_bcast:15 row_mask:0xa bank_mask:0xf")
    A("    s_nop 1")
    A("    v_add_u32_dpp v25, v25, v25 row_bcast:31 row_mask:0xc bank_mask:0xf")
    A("    s_nop 1")
    A("    v_lshrrev_b32 v26, 6, v0")
    A("    v_and_b32 v27, 63, v0")
    A("    v_cmp_eq_u32 vcc, 63, v27")
    A("    v_lshlrev_b32 v28, 2, v26")
    A("    s_and_saveexec_b64 s[48:49], vcc")
    A("    ds_write_b32 v28, v25 offset:40960")
    A("    s_mov_b64 exec, -1")
    A("    s_waitcnt lgkmcnt(0)")
    A("    s_barrier")
    A("    v_mov_b32 v29, 0")
    A("    ds_read_b128 v[32:35], v29 offset:40960")
    A("    ds_read_b128 v[36:39], v29 offset:40976")
    A("    ds_read_b128 v[40:43], v29 offset:40992")
    A("    ds_read_b128 v[44:47], v29 offset:41008")
    A("    s_waitcnt lgkmcnt(0)")
    A("    v_sub_u32 v30, v25, v24")
    for w in range(15):
        A(f"    v_cmp_lt_u32 vcc, {w}, v26")
        A("    s_nop 1")
        A(f"    v_cndmask_b32 v31, 0, v{32+w}, vcc")
        A("    v_add_u32 v30, v30, v31")
    A("    v_cmp_gt_u32 vcc, 1000, v0")
    A("    s_and_saveexec_b64 s[48:49], vcc")
    for k in range(10):
        A(f"    v_add_u32 v{14+k}, v{14+k}, v30")
        A(f"    ds_write_b32 v1, v{14+k} offset:{4*k}")
    A("    s_cmp_lg_u32 s2, 0")
    A("    s_cbranch_scc1 K2_NOOFF")
    A("    buffer_store_dwordx4 v[14:17], v1, s[28:31], 0 offen")
    A("    buffer_store_dwordx4 v[18:21], v1, s[28:31], 0 offen offset:16")
    A("    buffer_store_dwordx2 v[22:23], v1, s[28:31], 0 offen offset:32")
    A("    v_cmp_eq_u32 vcc, 999, v0")
    A("    s_and_b64 exec, exec, vcc")
    A("    v_add_u32 v31, v30, v24")
    A("    buffer_store_dword v31, v1, s[28:31], 0 offen offset:40")
    A("K2_NOOFF:")
    A("    s_mov_b64 exec, -1")
    A("    s_waitcnt lgkmcnt(0)")
    A("    s_barrier")
    A("    s_waitcnt vmcnt(0)")
    for i in range(5):
        A(f"    v_lshlrev_b32 v{53+i}, 2, v{53+i}")
        A(f"    ds_read_b32 v{53+i}, v{53+i}")
    A("    s_waitcnt lgkmcnt(0)")
    for i in range(5):
        A(f"    v_add_u32 v{53+i}, v{53+i}, v{58+i}")
        A(f"    v_lshlrev_b32 v{53+i}, 3, v{53+i}")
        A(f"    v_mov_b32 v{70+2*i}, v{63+i}")
        A(f"    v_mov_b32 v{71+2*i}, v{48+i}")
    for i in range(5):
        A(f"    buffer_store_dwordx2 v[{70+2*i}:{71+2*i}], v{53+i}, s[44:47], 0 offen")
    A("K2_END:")
    A("    s_endpgm")
    kernel_desc(name, 80)

K3_WGS = 512
NW3 = K3_WGS * 4
def k3():
    name = "egnn_k3_kernel"
    kernel_begin(name)
    load_args()
    A(f"    s_cmp_ge_u32 s2, {K3_WGS}")
    A("    s_cbranch_scc1 K3_END")
    srd(24, 22, WS_WTE, 12*1024)
    srd(28, 16, 0, 128)
    srd(32, 22, WS_SORT, E*8)
    srd(36, 4, 0, N*128)
    srd(40, 8, 0, E*32)
    srd(44, 22, WS_POS4, N*16)
    srd(48, 22, WS_P1, N*256)
    srd(52, 22, WS_MI, N*128)
    srd(56, 20, N*128, N*6)
    A(f"    s_add_u32 s60, s22, {WS_OFF:#x}")
    A("    s_addc_u32 s61, s23, 0")
    A("    v_and_b32 v1, 63, v0")
    A("    v_lshrrev_b32 v2, 6, v0")
    A("    v_and_b32 v3, 15, v1")
    A("    v_lshrrev_b32 v4, 4, v1")
    A("    v_lshlrev_b32 v5, 4, v4")
    A("    v_lshlrev_b32 v6, 3, v4")
    A("    v_mov_b32 v7, 0")
    A("    v_cmp_gt_u32 s[74:75], 2, v4")
    A("    v_cmp_eq_u32 s[76:77], 2, v4")
    A("    v_cmp_eq_u32 s[78:79], 0, v3")
    A("    v_cmp_eq_u32 s[80:81], 63, v1")
    A(f"    s_mov_b32 s88, {LOG2E_NEG}")
    A(f"    s_mov_b32 s89, {LOG2E_NEG}")
    A("    v_readfirstlane_b32 s62, v2")
    A("    s_lshl_b32 s63, s2, 2")
    A("    s_add_u32 s62, s62, s63")
    A("    s_lshl_b32 s63, s62, 2")
    A("    s_load_dwordx2 s[84:85], s[60:61], s63")
    A(f"    s_add_u32 s63, s63, {NW3*4}")
    A("    s_load_dwordx2 s[82:83], s[60:61], s63")
    A("    v_lshlrev_b32 v8, 4, v1")
    for t in range(12):
        if t*1024 < 4096:
            A(f"    buffer_load_dwordx4 v[{64+4*t}:{64+4*t+3}], v8, s[24:27], 0 offen offset:{t*1024}")
        else:
            A(f"    v_add_u32 v9, {t*1024}, v8")
            A(f"    buffer_load_dwordx4 v[{64+4*t}:{64+4*t+3}], v9, s[24:27], 0 offen")
    for j in range(4):
        A(f"    buffer_load_dwordx2 v[{48+2*j}:{48+2*j+1}], v6, s[28:31], 0 offen offset:{j*32}")
    A("    s_waitcnt vmcnt(0)")
    for j in range(4):
        A(f"    v_lshlrev_b32 v{112+4*j}, 16, v{48+2*j}")
        A(f"    v_and_b32 v{112+4*j+1}, 0xffff0000, v{48+2*j}")
        A(f"    v_lshlrev_b32 v{112+4*j+2}, 16, v{48+2*j+1}")
        A(f"    v_and_b32 v{112+4*j+3}, 0xffff0000, v{48+2*j+1}")
    for r in range(16):
        A(f"    v_mov_b32 v{32+r}, 0")
    for c in range(3):
        A(f"    v_mov_b32 v{28+c}, 0")
    A("    s_waitcnt lgkmcnt(0)")
    A("    s_mov_b32 s70, s62")
    A("    s_mov_b32 s71, s84")
    A("    s_mov_b32 s72, s85")

    BUF = lambda p: 128 + 56*p
    H0 = lambda p, tt: BUF(p) + 16*tt
    H1 = lambda p, tt: BUF(p) + 16*tt + 4
    AT = lambda p, tt: BUF(p) + 16*tt + 8
    PS = lambda p, tt: BUF(p) + 16*tt + 12
    P1C = lambda p: BUF(p) + 32
    PN = lambda p: BUF(p) + 48
    IDX = lambda p: BUF(p) + 52
    uid = [0]

    def gen_item():
        uid[0] += 1
        u = uid[0]
        A("    s_mov_b32 s64, s67\n    s_mov_b32 s65, s68\n    s_mov_b32 s66, s69")
        A("    s_mov_b32 s67, s70\n    s_mov_b32 s68, s71\n    s_mov_b32 s69, s72")
        A("    s_add_u32 s71, s71, 32")
        A("    s_cmp_lt_u32 s71, s72")
        A(f"    s_cbranch_scc1 K3_GI{u}")
        A(f"    s_add_u32 s70, s70, {NW3}")
        A("    s_waitcnt lgkmcnt(0)")
        A("    s_mov_b32 s71, s82")
        A("    s_mov_b32 s72, s83")
        A(f"    s_cmp_lt_u32 s70, {N}")
        A(f"    s_cbranch_scc1 K3_GV{u}")
        A(f"    s_mov_b32 s70, {N}")
        A("    s_mov_b32 s71, 0")
        A("    s_mov_b32 s72, 0")
        A(f"K3_GV{u}:")
        A(f"    s_add_u32 s63, s70, {NW3}")
        A(f"    s_min_u32 s63, s63, {N-1}")
        A("    s_lshl_b32 s63, s63, 2")
        A("    s_load_dwordx2 s[82:83], s[60:61], s63")
        A(f"K3_GI{u}:")

    def issue_idx(p):
        A("    v_add_u32 v8, s71, v3")
        A("    v_lshlrev_b32 v8, 3, v8")
        A(f"    buffer_load_dwordx2 v[{IDX(p)}:{IDX(p)+1}], v8, s[32:35], 0 offen")
        A(f"    buffer_load_dwordx2 v[{IDX(p)+2}:{IDX(p)+3}], v8, s[32:35], 0 offen offset:128")

    def issue_gather(p, nreg):
        for tt in range(2):
            sv, ev = IDX(p)+2*tt, IDX(p)+2*tt+1
            A(f"    v_lshl_add_u32 v8, v{sv}, 7, v5")
            A(f"    buffer_load_dwordx4 v[{H0(p,tt)}:{H0(p,tt)+3}], v8, s[36:39], 0 offen")
            A(f"    buffer_load_dwordx4 v[{H1(p,tt)}:{H1(p,tt)+3}], v8, s[36:39], 0 offen offset:64")
            A(f"    v_lshl_add_u32 v9, v{ev}, 5, v5")
            A(f"    v_cndmask_b32 v9, -1, v9, s[74:75]")
            A(f"    buffer_load_dwordx4 v[{AT(p,tt)}:{AT(p,tt)+3}], v9, s[40:43], 0 offen")
            A(f"    v_lshlrev_b32 v10, 4, v{sv}")
            A(f"    buffer_load_dwordx4 v[{PS(p,tt)}:{PS(p,tt)+3}], v10, s[44:47], 0 offen")
        A(f"    s_lshl_b32 s73, s{nreg}, 8")
        for j in range(4):
            A(f"    buffer_load_dwordx4 v[{P1C(p)+4*j}:{P1C(p)+4*j+3}], v5, s[48:51], s73 offen offset:{64*j}")
        A(f"    s_lshl_b32 s73, s{nreg}, 4")
        A(f"    buffer_load_dwordx4 v[{PN(p)}:{PN(p)+3}], v7, s[44:47], s73 offen")

    def prep(p, tt, dv, msk):
        ps = PS(p, tt); pn = PN(p); at = AT(p, tt)
        A(f"    v_add_u32 v8, s65, v3")
        if tt: A("    v_add_u32 v8, 16, v8")
        A(f"    v_cmp_gt_u32 s[{msk}:{msk+1}], s66, v8")
        for c in range(3):
            A(f"    v_sub_f32 v{dv+c}, v{pn+c}, v{ps+c}")
        A(f"    v_cvt_pk_bf16_f32 v15, v{dv}, v{dv+1}")
        A(f"    v_cvt_pk_bf16_f32 v19, v{dv+2}, v{dv+2}")
        A(f"    v_lshlrev_b32 v{dv}, 16, v15")
        A(f"    v_and_b32 v{dv+1}, 0xffff0000, v15")
        A(f"    v_lshlrev_b32 v{dv+2}, 16, v19")
        A(f"    v_mul_f32 v20, v{dv}, v{dv}")
        A(f"    v_fmac_f32 v20, v{dv+1}, v{dv+1}")
        A(f"    v_fmac_f32 v20, v{dv+2}, v{dv+2}")
        A("    v_cvt_pk_bf16_f32 v15, v20, v20")
        A("    v_and_b32 v15, 0xffff, v15")
        A(f"    v_cndmask_b32 v{at}, v{at}, v15, s[76:77]")
    def mfmas(p, tt, D):
        at = AT(p, tt)
        for j in range(4):
            d = D + 4*j
            A(f"    v_mfma_f32_16x16x32_bf16 v[{d}:{d+3}], v[{64+4*j}:{64+4*j+3}], v[{H0(p,tt)}:{H0(p,tt)+3}], v[{P1C(p)+4*j}:{P1C(p)+4*j+3}]")
        for j in range(4):
            d = D + 4*j
            A(f"    v_mfma_f32_16x16x32_bf16 v[{d}:{d+3}], v[{80+4*j}:{80+4*j+3}], v[{H1(p,tt)}:{H1(p,tt)+3}], v[{d}:{d+3}]")
        for j in range(4):
            d = D + 4*j
            A(f"    v_mfma_f32_16x16x32_bf16 v[{d}:{d+3}], v[{96+4*j}:{96+4*j+3}], v[{at}:{at+3}], v[{d}:{d+3}]")
    def post(D, dv, msk):
        for half in range(2):
            x = D + 8*half
            for r in range(0, 8, 2):
                A(f"    v_pk_mul_f32 v[{20+r}:{21+r}], v[{x+r}:{x+r+1}], s[88:89]")
            for r in range(8):
                A(f"    v_exp_f32 v{20+r}, v{20+r}")
            for r in range(0, 8, 2):
                A(f"    v_pk_add_f32 v[{20+r}:{21+r}], v[{20+r}:{21+r}], 1.0 op_sel_hi:[1,0]")
            for r in range(8):
                A(f"    v_rcp_f32 v{20+r}, v{20+r}")
            for r in range(0, 8, 2):
                A(f"    v_pk_mul_f32 v[{x+r}:{x+r+1}], v[{x+r}:{x+r+1}], v[{20+r}:{21+r}]")
        A(f"    s_mov_b64 exec, s[{msk}:{msk+1}]")
        for r in range(0, 16, 2):
            A(f"    v_pk_add_f32 v[{32+r}:{33+r}], v[{32+r}:{33+r}], v[{D+r}:{D+r+1}]")
            if r == 0:
                A(f"    v_pk_mul_f32 v[20:21], v[112:113], v[{D}:{D+1}]")
            else:
                A(f"    v_pk_fma_f32 v[20:21], v[{112+r}:{113+r}], v[{D+r}:{D+r+1}], v[20:21]")
        A("    v_add_f32 v15, v20, v21")
        for c in range(3):
            A(f"    v_fmac_f32 v{28+c}, v{dv+c}, v15")
        A("    s_mov_b64 exec, -1")

    def compute(p):
        uid[0] += 1
        u = uid[0]
        prep(p, 0, 16, 86)
        mfmas(p, 0, 48)
        A("    s_add_u32 s73, s65, 16")
        A("    s_cmp_ge_u32 s73, s66")
        A(f"    s_cbranch_scc1 K3_ONE{u}")
        prep(p, 1, 9, 90)
        mfmas(p, 1, 240)
        post(48, 16, 86)
        post(240, 9, 90)
        A(f"    s_branch K3_SKIP{u}")
        A(f"K3_ONE{u}:")
        A("    s_nop 4")
        post(48, 16, 86)
        A(f"K3_SKIP{u}:")
        A("    s_add_u32 s73, s65, 32")
        A("    s_cmp_lt_u32 s73, s66")
        A(f"    s_cbranch_scc1 K3_NOFIN{u}")
        for sh in (8, 4, 2, 1):
            for r in range(16):
                A(f"    v_add_f32_dpp v{32+r}, v{32+r}, v{32+r} row_ror:{sh} row_mask:0xf bank_mask:0xf")
            for c in range(3):
                A(f"    v_add_f32_dpp v{28+c}, v{28+c}, v{28+c} row_ror:{sh} row_mask:0xf bank_mask:0xf")
        A("    s_nop 1")
        for c in range(3):
            A(f"    v_add_f32_dpp v{28+c}, v{28+c}, v{28+c} row_bcast:15 row_mask:0xa bank_mask:0xf")
        A("    s_nop 1")
        for c in range(3):
            A(f"    v_add_f32_dpp v{28+c}, v{28+c}, v{28+c} row_bcast:31 row_mask:0xc bank_mask:0xf")
        for j in range(4):
            A(f"    v_cvt_pk_bf16_f32 v{48+2*j}, v{32+4*j}, v{32+4*j+1}")
            A(f"    v_cvt_pk_bf16_f32 v{48+2*j+1}, v{32+4*j+2}, v{32+4*j+3}")
        for c in range(3):
            A(f"    v_add_f32 v{28+c}, v{28+c}, v{PN(p)+c}")
        A("    v_cvt_pk_bf16_f32 v56, v28, v29")
        A("    v_cvt_pk_bf16_f32 v57, v30, v30")
        A("    v_lshrrev_b32 v58, 16, v56")
        A("    s_lshl_b32 s73, s64, 7")
        A("    s_mov_b64 exec, s[78:79]")
        for j in range(4):
            A(f"    buffer_store_dwordx2 v[{48+2*j}:{48+2*j+1}], v6, s[52:55], s73 offen offset:{32*j}")
        A("    s_mul_i32 s73, s64, 6")
        A("    s_mov_b64 exec, s[80:81]")
        A("    buffer_store_short v56, v7, s[56:59], s73 offen")
        A("    buffer_store_short v58, v7, s[56:59], s73 offen offset:2")
        A("    buffer_store_short v57, v7, s[56:59], s73 offen offset:4")
        A("    s_mov_b64 exec, -1")
        for r in range(16):
            A(f"    v_mov_b32 v{32+r}, 0")
        for c in range(3):
            A(f"    v_mov_b32 v{28+c}, 0")
        A(f"K3_NOFIN{u}:")

    issue_idx(0)
    gen_item()
    issue_idx(1)
    A("    s_waitcnt vmcnt(2)")
    issue_gather(0, 67)
    A("K3_LOOP:")
    for p in range(2):
        gen_item()
        A(f"    s_cmp_ge_u32 s64, {N}")
        A("    s_cbranch_scc1 K3_END")
        issue_idx(p)
        A("    s_waitcnt vmcnt(15)")
        issue_gather(1-p, 67)
        A("    s_waitcnt vmcnt(15)")
        compute(p)
    A("    s_branch K3_LOOP")
    A("K3_END:")
    A("    s_endpgm")
    kernel_desc(name, 256)

def k4():
    name = "egnn_k4_kernel"
    kernel_begin(name)
    load_args()
    A("    s_cmp_ge_u32 s2, 157")
    A("    s_cbranch_scc1 K4_END")
    srd(24, 22, WS_WTH, 16*1024)
    srd(28, 4, 0, N*128)
    srd(32, 22, WS_MI, N*128)
    srd(36, 20, 0, N*128)
    A("    v_and_b32 v1, 63, v0")
    A("    v_lshrrev_b32 v2, 6, v0")
    A("    v_and_b32 v3, 15, v1")
    A("    v_lshrrev_b32 v4, 4, v1")
    A("    v_lshlrev_b32 v6, 4, v1")
    for t in range(16):
        if t*1024 < 4096:
            A(f"    buffer_load_dwordx4 v[{64+4*t}:{64+4*t+3}], v6, s[24:27], 0 offen offset:{t*1024}")
        else:
            A(f"    v_add_u32 v7, {t*1024}, v6")
            A(f"    buffer_load_dwordx4 v[{64+4*t}:{64+4*t+3}], v7, s[24:27], 0 offen")
    A("    v_lshlrev_b32 v6, 6, s2")
    A("    v_lshl_add_u32 v6, v2, 4, v6")
    A("    v_add_u32 v6, v6, v3")
    A("    v_lshlrev_b32 v7, 7, v6")
    A("    v_lshl_add_u32 v8, v4, 4, v7")
    A("    buffer_load_dwordx4 v[16:19], v8, s[28:31], 0 offen")
    A("    buffer_load_dwordx4 v[20:23], v8, s[28:31], 0 offen offset:64")
    A("    buffer_load_dwordx4 v[24:27], v8, s[32:35], 0 offen")
    A("    buffer_load_dwordx4 v[28:31], v8, s[32:35], 0 offen offset:64")
    A("    v_lshl_add_u32 v9, v4, 3, v7")
    for j in range(4):
        A(f"    buffer_load_dwordx2 v[{32+2*j}:{32+2*j+1}], v9, s[28:31], 0 offen offset:{32*j}")
    A("    s_waitcnt vmcnt(0)")
    for j in range(4):
        d = 48 + 4*j
        for s in range(4):
            c = "0" if s == 0 else f"v[{d}:{d+3}]"
            A(f"    v_mfma_f32_16x16x32_bf16 v[{d}:{d+3}], v[{64+16*s+4*j}:{64+16*s+4*j+3}], v[{16+4*s}:{16+4*s+3}], {c}")
    A("    s_nop 15")
    for r in range(16):
        silu(48+r, 15)
    for j in range(4):
        A(f"    v_cvt_pk_bf16_f32 v40, v{48+4*j}, v{48+4*j+1}")
        A(f"    v_cvt_pk_bf16_f32 v41, v{48+4*j+2}, v{48+4*j+3}")
        A(f"    v_lshlrev_b32 v42, 16, v40")
        A(f"    v_and_b32 v43, 0xffff0000, v40")
        A(f"    v_lshlrev_b32 v44, 16, v41")
        A(f"    v_and_b32 v45, 0xffff0000, v41")
        A(f"    v_lshlrev_b32 v46, 16, v{32+2*j}")
        A(f"    v_add_f32 v42, v42, v46")
        A(f"    v_and_b32 v46, 0xffff0000, v{32+2*j}")
        A(f"    v_add_f32 v43, v43, v46")
        A(f"    v_lshlrev_b32 v46, 16, v{32+2*j+1}")
        A(f"    v_add_f32 v44, v44, v46")
        A(f"    v_and_b32 v46, 0xffff0000, v{32+2*j+1}")
        A(f"    v_add_f32 v45, v45, v46")
        A(f"    v_cvt_pk_bf16_f32 v{10+2*j}, v42, v43")
        A(f"    v_cvt_pk_bf16_f32 v{10+2*j+1}, v44, v45")
    for j in range(4):
        A(f"    buffer_store_dwordx2 v[{10+2*j}:{10+2*j+1}], v9, s[36:39], 0 offen offset:{32*j}")
    A("K4_END:")
    A("    s_endpgm")
    kernel_desc(name, 128)

hdr = open("gather_scatter__cheap_equivariant_egnn__graph.s.ref").read().split("; @launch")[0]
A(hdr.rstrip("\n"))
A("; @launch kernel=egnn_k0_kernel grid=(157,1,1) block=(256,1,1) lds=0")
A(f"; @launch kernel=egnn_k1_kernel grid=({G1},1,1) block=(1024,1,1) lds=40960")
A(f"; @launch kernel=egnn_k2_kernel grid=({G2},1,1) block=(1024,1,1) lds=41024")
A(f"; @launch kernel=egnn_k3_kernel grid=({K3_WGS},1,1) block=(256,1,1) lds=0")
A("; @launch kernel=egnn_k4_kernel grid=(157,1,1) block=(256,1,1) lds=0")
A('.amdgcn_target "amdgcn-amd-amdhsa--gfx950"')
A(".text")
k0(); k1(); k2(); k3(); k4()
A('.section .rodata,"a"')
for d in descs:
    A(d)
open("gather_scatter__cheap_equivariant_egnn__graph.s", "w").write("\n".join(out) + "\n")
```
